```python
import torch

def _softmax(x, axis=-1):
    return torch.softmax(x, dim=axis)
def _gelu(x):
    return torch.nn.functional.gelu(x, approximate="tanh")
def _silu(x):
    return torch.nn.functional.silu(x)
def _sigmoid(x):
    return torch.sigmoid(x)
def _layernorm(x, axis=-1, eps=1e-5):
    m = x.mean(dim=axis, keepdim=True)
    v = x.var(dim=axis, keepdim=True, unbiased=False)
    return (x - m) / torch.sqrt(v + eps)
def _scatter_add(tgt, idx, src, axis=0):
    return tgt.clone().index_add_(axis, idx, src)
def _segment_sum(src, seg, n):
    out = torch.zeros((n,) + src.shape[1:], dtype=src.dtype)
    return out.index_add_(0, seg, src)
def _pad(x, pw):
    flat = tuple(v for pair in reversed(pw) for v in pair)
    return torch.nn.functional.pad(x, flat)

kernel_name = 'sequential_preLN__ssm_conv_s4__glu_gated_bilinear__prompt'

def setup_inputs():

    _w = (lambda a: (lambda t: t.to(torch.bfloat16) if t.is_floating_point() else t)(torch.as_tensor(a)))
    def _A_setup():
        B, L, D, N = 1, 2048, 512, 128
        A_re = -(lambda _x: torch.exp(torch.as_tensor(_x)))((lambda *s: torch.randn(*s, dtype=torch.bfloat16) * 6.4)(D, N))
        A_im = torch.pi * (lambda *s: torch.randn(*s, dtype=torch.bfloat16) * 0.05)(D, N)
        B_re = (lambda *s: torch.randn(*s, dtype=torch.bfloat16) * 0.1)(D, N)
        B_im = (lambda *s: torch.randn(*s, dtype=torch.bfloat16) * 0.1)(D, N)
        C_re = (lambda *s: torch.randn(*s, dtype=torch.bfloat16) * 0.1)(D, N)
        C_im = (lambda *s: torch.randn(*s, dtype=torch.bfloat16) * 0.1)(D, N)
        log_dt = (lambda *s: torch.randn(*s, dtype=torch.bfloat16) * 0.05)(D) * 0.5 - 4.0
        Dskip = (lambda *s: torch.randn(*s, dtype=torch.bfloat16) * 0.05)(D)
        return {
            "u": _w((lambda *s: torch.randn(*s, dtype=torch.bfloat16) * 0.05)(B, L, D)),
            "A_re": _w(A_re),
            "A_im": _w(A_im),
            "B_re": _w(B_re),
            "B_im": _w(B_im),
            "C_re": _w(C_re),
            "C_im": _w(C_im),
            "log_dt": _w(log_dt),
            "Dskip": _w(Dskip),
        }
    _A_in = _A_setup()

    def _B_setup():
        B, S, D, F = 1, 2048, 512, 1792
        return {
            "x": _w((lambda *s: torch.randn(*s, dtype=torch.bfloat16) * 0.05)(B, S, D)),
            "w_gate": _w((lambda *s: torch.randn(*s, dtype=torch.bfloat16) * 0.4)(D, F) * (D ** -0.5)),
            "w_up": _w((lambda *s: torch.randn(*s, dtype=torch.bfloat16) * 0.4)(D, F) * (D ** -0.5)),
            "w_down": _w((lambda *s: torch.randn(*s, dtype=torch.bfloat16) * 0.4)(F, D) * (F ** -0.5)),
        }
    _B_in = _B_setup()

    return {
        "A_u": _A_in["u"],
        "A_A_re": _A_in["A_re"],
        "A_A_im": _A_in["A_im"],
        "A_B_re": _A_in["B_re"],
        "A_B_im": _A_in["B_im"],
        "A_C_re": _A_in["C_re"],
        "A_C_im": _A_in["C_im"],
        "A_log_dt": _A_in["log_dt"],
        "A_Dskip": _A_in["Dskip"],
        "B_x": _B_in["x"],
        "B_w_gate": _B_in["w_gate"],
        "B_w_up": _B_in["w_up"],
        "B_w_down": _B_in["w_down"],
    }

def reference(A_u, A_A_re, A_A_im, A_B_re, A_B_im, A_C_re, A_C_im, A_log_dt, A_Dskip, B_x, B_w_gate, B_w_up, B_w_down):
    def _A_ref(u, A_re, A_im, B_re, B_im, C_re, C_im, log_dt, Dskip):
        Bsz, L, D = u.shape
        dt = torch.exp(log_dt)[:, None]
        A = A_re + 1j * A_im
        Bc = B_re + 1j * B_im
        Cc = C_re + 1j * C_im
        logdA = dt * A
        dB = dt * Bc
        l = (lambda x, dt: x.to(dt))(torch.arange(L), A_re.dtype)
        P = torch.exp(logdA[:, :, None] * l[None, None, :])
        K = torch.einsum("dn,dnl,dn->dl", Cc, P, dB).real
        L2 = 2 * L
        Kp = _pad(K, ((0, 0), (0, L)))
        up = (lambda x, *d: x.permute(*d))(u, 0, 2, 1)
        up = _pad(up, ((0, 0), (0, 0), (0, L)))
        Kf = (lambda x, axes=(-2,-1): torch.fft.rfft2(x.float(), dim=axes))(Kp[:, None, :], axes=(-2, -1))
        Uf = (lambda x, axes=(-2,-1): torch.fft.rfft2(x.float(), dim=axes))(up[:, :, None, :], axes=(-2, -1))
        Yf = Uf * Kf[None, :, :, :]
        y = (lambda x, s, axes=(-2,-1): torch.fft.irfft2(x, s=s, dim=axes).to(torch.bfloat16))(Yf, (1, L2), axes=(-2, -1))[:, :, 0, :L]
        y = (lambda x, *d: x.permute(*d))(y, 0, 2, 1) + u * Dskip[None, None, :]
        return y

    def _B_ref(x, w_gate, w_up, w_down):
        g = torch.einsum("bsd,df->bsf", x, w_gate)
        u = torch.einsum("bsd,df->bsf", x, w_up)
        h = g * u
        return torch.einsum("bsf,fd->bsd", h, w_down)

    x = A_u
    h = x + _A_ref(_layernorm(x, axis=-1), A_A_re, A_A_im, A_B_re, A_B_im, A_C_re, A_C_im, A_log_dt, A_Dskip)
    h2 = h + _B_ref(_layernorm(h, axis=-1), B_w_gate, B_w_up, B_w_down)
    return h2
```

```python
import re

TRANS = ("v_exp_f32", "v_log_f32", "v_rcp_f32", "v_rsq_f32", "v_sqrt_f32", "v_sin_f32", "v_cos_f32", "v_rcp_iflag_f32")

def _regs(tok):
    tok = tok.strip()
    t = tok
    if t.startswith("-"): t = t[1:]
    if t.startswith("abs(") and t.endswith(")"): t = t[4:-1]
    if t.startswith("|") and t.endswith("|"): t = t[1:-1]
    m = re.fullmatch(r"([vas])(\d+)", t)
    if m: return {(m.group(1), int(m.group(2)))}
    m = re.fullmatch(r"([vas])\[(\d+):(\d+)\]", t)
    if m: return {(m.group(1), i) for i in range(int(m.group(2)), int(m.group(3)) + 1)}
    if t in ("vcc", "vcc_lo", "vcc_hi"): return {("vcc", 0)}
    if t in ("exec", "exec_lo", "exec_hi"): return {("exec", 0)}
    if t == "m0": return {("m0", 0)}
    return set()

def _split(s):
    out, depth, cur = [], 0, ""
    for ch in s:
        if ch in "[(": depth += 1
        if ch in "])": depth -= 1
        if ch == "," and depth == 0:
            out.append(cur.strip()); cur = ""
        else: cur += ch
    if cur.strip(): out.append(cur.strip())
    return out

class I:
    def __init__(self, text):
        self.text = text
        body = text.split(";")[0].strip()
        parts = body.split(None, 1)
        self.mn = parts[0]
        rest = parts[1] if len(parts) > 1 else ""
        ops = _split(rest)
        mods = ""
        if ops:
            last = ops[-1].split(None, 1)
            ops[-1] = last[0]
            mods = last[1] if len(last) > 1 else ""
        self.ops, self.mods = ops, mods
        mn = self.mn
        self.mfma = mn.startswith("v_mfma")
        self.valu = mn.startswith("v_") and not self.mfma
        self.salu = mn.startswith("s_")
        self.ds = mn.startswith("ds_")
        self.vmem = mn.startswith(("buffer_", "global_", "flat_"))
        self.trans = mn.replace("_e32", "").replace("_e64", "") in TRANS
        self.dpp = "_dpp" in mn
        self.sdwa = "_sdwa" in mn
        self.perml = mn.startswith("v_permlane")
        self.rdlane = mn.startswith(("v_readfirstlane", "v_readlane"))
        self.ldsdma = self.vmem and (" lds" in (" " + mods) or "load_lds" in mn)
        self.w, self.r = set(), set()
        R = [_regs(o) for o in ops]
        if self.mfma:
            self.w = R[0]; self.ra = R[1] | R[2]; self.rc = R[3]; self.r = self.ra | self.rc
            self.passes = 8 if "32x32x16" in mn else 4 if "16x16x32" in mn else 16
        elif self.valu:
            if self.perml:
                self.w = R[0] | R[1]; self.r = R[0] | R[1]
            elif mn.startswith(("v_add_co", "v_sub_co", "v_addc_co", "v_subb_co", "v_subrev_co")):
                self.w = R[0] | R[1]; self.r = set().union(*R[2:])
            elif mn.startswith("v_nop"):
                pass
            else:
                self.w = R[0]; self.r = set().union(*R[1:]) if len(R) > 1 else set()
                if mn.startswith(("v_fmac", "v_dot2c", "v_pk_fmac", "v_writelane")) or self.dpp or self.sdwa: self.r |= R[0]
                if mn.startswith("v_cmpx"): self.w |= {("exec", 0)}
        elif self.ds:
            if mn.startswith(("ds_read", "ds_bpermute", "ds_permute", "ds_swizzle")) or "_rtn" in mn:
                self.w = R[0]; self.r = set().union(*R[1:])
            else: self.r = set().union(*R)
        elif self.vmem:
            if mn.startswith(("buffer_wbl2", "buffer_inv")): pass
            elif self.ldsdma or "store" in mn: self.r = set().union(*R)
            elif "atomic" in mn:
                self.r = set().union(*R)
                if "sc0" in mods: self.w = R[0]
            else:
                self.w = R[0]; self.r = set().union(*R[1:])
                if "d16" in mn: self.r |= R[0]
        elif self.salu:
            if mn.startswith(("s_cmp", "s_cbranch", "s_branch", "s_waitcnt", "s_barrier", "s_nop", "s_endpgm", "s_sleep", "s_setprio", "s_bitcmp")):
                self.r = set().union(*R) if R else set()
            else:
                self.w = R[0] if R else set(); self.r = set().union(*R[1:]) if len(R) > 1 else set()
                if "saveexec" in mn: self.w |= {("exec", 0)}
        self.widestore = self.vmem and "store" in mn and ("x4" in mn or "x3" in mn)
        if self.widestore:
            self.sdata = R[0] if mn.startswith("buffer_") else R[1]
    def states(self):
        if self.mn == "s_nop": return int(self.ops[0], 0) + 1
        return 1

def need(p, c):
    n = 0
    vw = {x for x in p.w if x[0] in "va"}
    sw = {x for x in p.w if x[0] in ("s", "vcc")}
    if p.valu:
        if c.mfma and vw & c.r: n = max(n, 2)
        if c.dpp and vw & c.r: n = max(n, 2)
        if c.perml and vw & c.r: n = max(n, 2)
        if c.rdlane and vw & c.r: n = max(n, 1)
        if p.trans and c.valu and not c.trans and vw & c.r: n = max(n, 1)
        if p.trans and c.valu and c.trans and vw & c.r: n = max(n, 1)
        if (p.sdwa or "op_sel" in p.mods and not p.mn.startswith("v_pk")) and c.valu and vw & (c.r | c.w): n = max(n, 1)
        if sw:
            if c.valu and sw & c.r: n = max(n, 4 if c.mn.startswith(("v_readlane", "v_writelane", "v_div_fmas")) else 2)
            if c.vmem and sw & c.r: n = max(n, 5)
            if c.salu and sw & c.r: n = max(n, 2)
        if ("exec", 0) in p.w:
            if c.dpp: n = max(n, 5)
            if c.mfma or c.perml or c.rdlane: n = max(n, 4)
            if c.valu and ("exec", 0) in c.r: n = max(n, 2)
        if p.mn.startswith("v_dot") and vw & (c.r | c.w) and (c.valu or c.mfma or c.vmem or c.ds):
            same = c.mn == p.mn
            if not same: n = max(n, 3)
            else:
                ab = set().union(*[_regs(o) for o in c.ops[1:3]])
                if vw & ab: n = max(n, 3)
    if p.mfma:
        t = {4: 8, 8: 12, 16: 20}[p.passes]
        if c.mfma:
            if p.w & c.ra: n = max(n, t)
            if p.w & c.rc and not (p.w == c.rc and p.passes == c.passes): n = max(n, t - 2)
            if p.w & c.w and not (p.w & c.rc): n = max(n, t - 2)
        elif (c.valu and p.w & (c.r | c.w)) or ((c.vmem or c.ds) and p.w & (c.r | c.w)): n = max(n, t)
        if c.valu and p.rc & c.w: n = max(n, {4: 3, 8: 7, 16: 15}[p.passes])
    if p.salu and ("m0", 0) in p.w and (c.ldsdma or "addtid" in c.mn): n = max(n, 1)
    if p.widestore and p.sdata & c.w: n = max(n, 2 if c.valu else 1)
    return n

class Asm:
    def __init__(self):
        self.out = []
        self.hist = []
        self.nops = 0
    def raw(self, s): self.out.append(s)
    def label(self, l):
        self.out.append(l + ":")
    def c(self, s): self.out.append("    ; " + s)
    def __call__(self, s):
        for line in s.split("\n"):
            line = line.strip()
            if not line: continue
            if line.startswith(";"): self.out.append("    " + line); continue
            if line.endswith(":"): self.label(line[:-1]); continue
            ins = I(line)
            dist, pad = 0, 0
            for p in reversed(self.hist):
                pad = max(pad, need(p, ins) - dist)
                dist += p.states()
                if dist >= 24: break
            while pad > 0:
                k = min(pad, 16)
                nop = I("s_nop %d" % (k - 1)); self.hist.append(nop); self.out.append("    " + nop.text + "   ; hazard pad"); self.nops += 1
                pad -= k
            self.hist.append(ins); self.out.append("    " + line)
            if len(self.hist) > 64: self.hist = self.hist[-40:]
    def text(self): return "\n".join(self.out) + "\n"

def v(i, n=1): return "v%d" % i if n == 1 else "v[%d:%d]" % (i, i + n - 1)
def a(i, n=1): return "a%d" % i if n == 1 else "a[%d:%d]" % (i, i + n - 1)
def s(i, n=1): return "s%d" % i if n == 1 else "s[%d:%d]" % (i, i + n - 1)
```

```python
import sys
from asmlib import *

NAME = "sequential_preLN__ssm_conv_s4__glu_gated_bilinear__prompt"
X2, KX, H2, W1P, W2P, HH, ST1, ST2, WSEND = 0x0, 0x200000, 0x400000, 0x600000, 0x980000, 0xB40000, 0x1240000, 0x1250000, 0x1290000
DPP = "row_mask:0xf bank_mask:0xf"

def srd(A, d, ptr, nbytes):
    A(f"s_mov_b32 s{d}, s{ptr}")
    A(f"s_and_b32 s{d+1}, s{ptr+1}, 0xffff")
    A(f"s_mov_b32 s{d+2}, {nbytes:#x}")
    A(f"s_mov_b32 s{d+3}, 0x20000")

def allreduce(A, regs, tmp):
    for ctl in ("quad_perm:[1,0,3,2]", "quad_perm:[2,3,0,1]", "row_half_mirror", "row_mirror"):
        for r in regs: A(f"v_add_f32_dpp v{r}, v{r}, v{r} {ctl} {DPP}")
    for sw in ("v_permlane16_swap_b32", "v_permlane32_swap_b32"):
        for r, t in zip(regs, tmp): A(f"v_mov_b32 v{t}, v{r}")
        for r, t in zip(regs, tmp): A(f"{sw} v{r}, v{t}")
        for r, t in zip(regs, tmp): A(f"v_add_f32 v{r}, v{r}, v{t}")

def cmul(A, d, x, y):
    A(f"v_pk_mul_f32 {v(d,2)}, {v(x,2)}, {v(y,2)} op_sel:[0,0] op_sel_hi:[0,1]")
    A(f"v_pk_fma_f32 {v(d,2)}, {v(x,2)}, {v(y,2)}, {v(d,2)} op_sel:[1,1,0] op_sel_hi:[1,0,1] neg_lo:[1,0,0]")

def cmul_multi(A, items):
    for d, x, y in items: A(f"v_pk_mul_f32 {v(d,2)}, {v(x,2)}, {v(y,2)} op_sel:[0,0] op_sel_hi:[0,1]")
    for d, x, y in items: A(f"v_pk_fma_f32 {v(d,2)}, {v(x,2)}, {v(y,2)}, {v(d,2)} op_sel:[1,1,0] op_sel_hi:[1,0,1] neg_lo:[1,0,0]")

def fbits(x):
    import struct
    return struct.unpack("<I", struct.pack("<f", x))[0]

def cexp_multi(A, items, a2, w, tmp):
    for k, (d, e) in enumerate(items):
        A(f"v_mul_f32 v{tmp+k}, {fbits(float(e)):#x}, v{a2}")
        A(f"v_mul_f32 v{d}, {fbits(float(e)):#x}, v{w}")
    for k, (d, e) in enumerate(items):
        A(f"v_exp_f32 v{tmp+k}, v{tmp+k}")
        A(f"v_fract_f32 v{d}, v{d}")
    for k, (d, e) in enumerate(items):
        A(f"v_sin_f32 v{d+1}, v{d}")
        A(f"v_cos_f32 v{d}, v{d}")
    for k, (d, e) in enumerate(items):
        A(f"v_mul_f32 v{d+1}, v{d+1}, v{tmp+k}")
        A(f"v_mul_f32 v{d}, v{d}, v{tmp+k}")

PITCH = 528
def crow(r, hi): return (r & 3) + 8 * (r >> 2) + 4 * hi
PMAP = {}
for o in range(8): PMAP[o] = (o, 0)
for k, o in enumerate((0, 2, 4, 6, 8)): PMAP[256 + o] = (8 + k, 0)
for k, o in enumerate((0, 4, 8)): PMAP[512 + o] = (13 + k, 0)
for k, o in enumerate((0, 4, 8)): PMAP[768 + o] = (k, 1)
for m in range(4):
    PMAP[1024 + 256 * m] = (3 + 2 * m, 1); PMAP[1024 + 256 * m + 8] = (4 + 2 * m, 1)

def role_kgen(A):
    A("s_load_dwordx4 s[4:7], s[0:1], 8")
    A("s_load_dwordx4 s[8:11], s[0:1], 24")
    A("s_load_dwordx4 s[12:15], s[0:1], 40")
    A("s_load_dwordx2 s[16:17], s[0:1], 56")
    A("s_load_dwordx2 s[18:19], s[0:1], 120")
    A("v_and_b32 v1, 127, v0")
    A("s_lshl_b32 s3, s2, 8")
    A("v_lshlrev_b32 v2, 1, v1")
    A("v_add_u32 v2, s3, v2")
    A("s_lshl_b32 s3, s2, 1")
    A("v_mov_b32 v3, s3")
    A("v_lshlrev_b32 v1, 2, v1")
    for r in range(4, 11): A(f"v_mov_b32 v{r}, 0")
    A("v_readfirstlane_b32 s20, v0")
    A("s_waitcnt lgkmcnt(0)")
    A("global_load_short_d16_hi v4, v3, s[16:17]")
    A("global_load_short_d16_hi v5, v2, s[4:5]")
    A("global_load_short_d16_hi v6, v2, s[6:7]")
    A("global_load_short_d16_hi v7, v2, s[8:9]")
    A("global_load_short_d16_hi v8, v2, s[10:11]")
    A("global_load_short_d16_hi v9, v2, s[12:13]")
    A("global_load_short_d16_hi v10, v2, s[14:15]")
    srd(A, 24, 18, WSEND)
    A("s_mov_b32 s21, 0x3fb8aa3b")
    A("s_mov_b32 s22, 0x32a57060")
    A("s_mov_b32 s23, 0x3f317218")
    A("s_waitcnt vmcnt(6)")
    A("v_mul_f32 v11, s21, v4")
    A("v_fma_f32 v12, v4, s21, -v11")
    A("v_fma_f32 v12, v4, s22, v12")
    A("v_exp_f32 v11, v11")
    A("v_mul_f32 v12, s23, v12")
    A("v_fma_f32 v11, v11, v12, v11")
    A("v_cvt_pk_bf16_f32 v11, v11, v11")
    A("v_lshlrev_b32 v11, 16, v11")
    A("s_waitcnt vmcnt(4)")
    A("v_mul_f32 v5, v11, v5")
    A("v_mul_f32 v6, v11, v6")
    A("v_mul_f32 v5, s21, v5")
    A("v_mul_f32 v6, 0.15915494, v6")
    A("s_cmp_ge_u32 s20, 128")
    A("s_cbranch_scc1 L_kg_p")
    Z8, C = 12, [20, 22, 24, 26]; D = [28, 30, 32, 34]
    cexp_multi(A, [(Z8, 8), (C[1], 64)], 5, 6, 16)
    A(f"v_mov_b32 v{C[0]}, 1.0"); A(f"v_mov_b32 v{C[0]+1}, 0")
    cmul(A, C[2], C[1], C[1]); cmul(A, C[3], C[2], C[1])
    cur, nxt = C, D
    for st in range(8):
        if st < 7: cmul_multi(A, [(nxt[k], cur[k], Z8) for k in range(4)])
        for k in range(4):
            A(f"v_cvt_pk_bf16_f32 v{40+k}, v{cur[k]}, v{cur[k]+1}")
        for k in range(4):
            A(f"ds_write_b32 v1, v{40+k} offset:{(28 + 8*k + st) * PITCH}")
        cur, nxt = nxt, cur
    A("s_branch L_kg_join")
    A("L_kg_p:")
    Z1, Z256 = 12, 14
    cexp_multi(A, [(Z1, 1), (Z256, 256)], 5, 6, 16)
    A("s_waitcnt vmcnt(0)")
    A("v_mul_f32 v18, v11, v7"); A("v_mul_f32 v19, v11, v8")
    A("v_mov_b32 v8, v9"); A("v_mov_b32 v9, v10")
    S = [20 + 2 * k for k in range(9)]
    Zp = {256: Z256, 512: 40, 768: 42, 1024: 44, 1280: 46, 1536: 48, 1792: 50}
    Z2, Z4 = 52, 54
    cmul_multi(A, [(S[0], 8, 18), (Z2, Z1, Z1), (Zp[512], Z256, Z256)])
    cmul_multi(A, [(S[1], S[0], Z1), (S[2], S[0], Z2), (Z4, Z2, Z2), (Zp[768], Zp[512], Z256), (Zp[1024], Zp[512], Zp[512])])
    cmul_multi(A, [(S[3], S[1], Z2), (S[4], S[0], Z4), (S[5], S[1], Z4), (S[6], S[2], Z4), (Zp[1280], Zp[1024], Z256), (Zp[1536], Zp[768], Zp[768]), (Zp[1792], Zp[1024], Zp[768])])
    cmul_multi(A, [(S[7], S[3], Z4), (S[8], S[4], Z4)])
    def putp(lst):
        for k, (reg, e) in enumerate(lst): A(f"v_cvt_pk_bf16_f32 v{72+k}, v{reg}, -v{reg+1}")
        for k, (reg, e) in enumerate(lst): A(f"ds_write_b32 v1, v{72+k} offset:{crow(*PMAP[e]) * PITCH}")
    putp([(S[o], o) for o in range(8)])
    rest = [(b, o) for b in (256,) for o in (0, 2, 4, 6, 8)] + [(b, o) for b in (512, 768) for o in (0, 4, 8)] + \
           [(b, o) for b in (1024, 1280, 1536, 1792) for o in (0, 8)]
    for c0 in range(0, len(rest), 7):
        ch = rest[c0:c0 + 7]
        cmul_multi(A, [(56 + 2 * k, S[o], Zp[b]) for k, (b, o) in enumerate(ch)])
        putp([(56 + 2 * k, b + o) for k, (b, o) in enumerate(ch)])
    A("L_kg_join:")
    A("s_waitcnt vmcnt(0) lgkmcnt(0)")
    A("s_barrier")
    A("s_cmp_lg_u32 s20, 0")
    A("s_cbranch_scc1 L_prep_end")
    A("v_and_b32 v1, 31, v0")
    A("v_lshrrev_b32 v2, 5, v0")
    A(f"v_mul_u32_u24 v3, {PITCH}, v1")
    A("v_lshl_add_u32 v3, v2, 4, v3")
    FA, FB = 32, 64
    for half in range(2):
        for k in range(8):
            kk = half * 8 + k
            A(f"ds_read_b128 {v(FA+4*k,4)}, v3 offset:{kk*32}")
            A(f"ds_read_b128 {v(FB+4*k,4)}, v3 offset:{28*PITCH + kk*32}")
        for k in range(8):
            A(f"s_waitcnt lgkmcnt({14-2*k})")
            src = "0" if (half == 0 and k == 0) else v(16, 16)
            A(f"v_mfma_f32_32x32x16_bf16 {v(16,16)}, {v(FA+4*k,4)}, {v(FB+4*k,4)}, {src}")
    A("s_lshl_b32 s3, s2, 12")
    A(f"s_add_u32 s3, s3, {KX:#x}")
    A("v_lshlrev_b32 v4, 4, v1")
    A("v_and_b32 v5, 1, v0")
    A("v_cmp_eq_u32 vcc, 1, v5")
    def R(e): return 16 + PMAP[e][0]
    def blk(dst, rng, pairs):
        for k, (x, y) in enumerate(pairs): A(f"v_cvt_pk_bf16_f32 v{dst+k}, v{x}, v{y}")
        A(f"buffer_store_dwordx4 {v(dst,4)}, v4, s[24:27], s3 offen offset:{rng*512}")
    A("s_mov_b32 exec_hi, 0")
    blk(32, 0, [(R(0), R(1)), (R(2), R(3)), (R(4), R(5)), (R(6), R(7))])
    blk(36, 1, [(R(256), R(256)), (R(258), R(260)), (R(260), R(260)), (R(262), R(264))])
    blk(40, 2, [(R(512), R(512)), (R(512), R(516)), (R(516), R(516)), (R(520), R(520))])
    A("s_mov_b32 exec_hi, -1")
    A("s_mov_b32 exec_lo, 0")
    blk(44, 3, [(R(768), R(768)), (R(768), R(772)), (R(772), R(772)), (R(776), R(776))])
    for m in range(4):
        b0 = 1024 + 256 * m
        A(f"v_cndmask_b32 v{8+m}, v{R(b0)}, v{R(b0+8)}, vcc")
        blk(48 + 4 * m, 4 + m, [(R(b0), R(b0)), (R(b0), R(b0)), (8 + m, R(b0 + 8)), (R(b0 + 8), R(b0 + 8))])
    A("s_endpgm")

def role_ln1(A):
    A("s_load_dwordx2 s[4:5], s[0:1], 0")
    A("s_load_dwordx2 s[6:7], s[0:1], 120")
    A("s_and_b32 s8, s2, 7")
    A("s_lshr_b32 s9, s2, 3")
    A("s_lshl_b32 s8, s8, 5")
    A("s_add_u32 s8, s8, s9")
    A("s_lshr_b32 s9, s8, 2")
    A("s_and_b32 s10, s8, 3")
    A("s_lshl_b32 s11, s9, 5")
    A("s_add_u32 s11, s11, s10")
    A("s_lshl_b32 s11, s11, 10")
    A("v_lshlrev_b32 v1, 2, v0")
    A("v_lshrrev_b32 v2, 6, v0")
    A("v_and_b32 v3, 63, v0")
    A("v_lshlrev_b32 v3, 4, v3")
    A("v_lshl_add_u32 v3, v2, 13, v3")
    A("v_add_u32 v4, 0x1000, v3")
    A("s_waitcnt lgkmcnt(0)")
    srd(A, 12, 4, 0x200000)
    srd(A, 16, 6, WSEND)
    A("buffer_load_dwordx4 v[16:19], v3, s[12:15], s11 offen")
    A("buffer_load_dwordx4 v[20:23], v4, s[12:15], s11 offen")
    for i in range(8):
        A(f"buffer_load_dword v{8+i}, v1, s[12:15], s11 offen")
        if i < 7: A("s_add_u32 s11, s11, 0x1000")
    A("v_lshlrev_b32 v5, 13, v0")
    A("s_lshl_b32 s20, s8, 5")
    A("s_mov_b32 s21, 0xffff0000")
    A("s_waitcnt vmcnt(8)")
    for r in range(2):
        for k in range(4):
            A(f"v_lshlrev_b32 v{24+8*r+2*k}, 16, v{16+4*r+k}")
            A(f"v_and_b32 v{25+8*r+2*k}, s21, v{16+4*r+k}")
    for r in range(2):
        A(f"v_add_f32 v{40+r}, v{24+8*r}, v{25+8*r}")
    for k in range(2, 8):
        for r in range(2): A(f"v_add_f32 v{40+r}, v{40+r}, v{24+8*r+k}")
    allreduce(A, [40, 41], [42, 43])
    for r in range(2): A(f"v_mul_f32 v{40+r}, {fbits(1/512):#x}, v{40+r}")
    for k in range(8):
        for r in range(2): A(f"v_sub_f32 v{24+8*r+k}, v{24+8*r+k}, v{40+r}")
    for r in range(2): A(f"v_mul_f32 v{44+r}, v{24+8*r}, v{24+8*r}")
    for k in range(1, 8):
        for r in range(2): A(f"v_fmac_f32 v{44+r}, v{24+8*r+k}, v{24+8*r+k}")
    allreduce(A, [44, 45], [42, 43])
    A("s_waitcnt vmcnt(0)")
    A(f"buffer_store_dwordx4 v[8:11], v5, s[16:19], s20 offen")
    A(f"buffer_store_dwordx4 v[12:15], v5, s[16:19], s20 offen offset:16")
    for r in range(2): A(f"v_mul_f32 v{44+r}, {fbits(1/512):#x}, v{44+r}")
    A("v_cvt_pk_bf16_f32 v46, v44, v45")
    A("v_lshlrev_b32 v44, 16, v46"); A("v_and_b32 v45, s21, v46")
    for r in range(2): A(f"v_add_f32 v{44+r}, {fbits(1e-5):#x}, v{44+r}")
    A("v_cvt_pk_bf16_f32 v46, v44, v45")
    A("v_lshlrev_b32 v44, 16, v46"); A("v_and_b32 v45, s21, v46")
    for r in range(2): A(f"v_sqrt_f32 v{44+r}, v{44+r}")
    for r in range(2): A(f"v_cvt_pk_bf16_f32 v{46+r}, v{40+r}, v{44+r}")
    A("v_lshlrev_b32 v2, 3, v2")
    A(f"s_add_u32 s20, s20, {ST1:#x}")
    A("s_mov_b64 exec, 1")
    A("buffer_store_dwordx2 v[46:47], v2, s[16:19], s20 offen")
    A("s_endpgm")

def role_rp1(A):
    A("s_load_dwordx4 s[4:7], s[0:1], 80")
    A("s_load_dwordx2 s[8:9], s[0:1], 120")
    A("v_readfirstlane_b32 s10, v0")
    A("s_lshr_b32 s10, s10, 6")
    A("s_cmp_ge_u32 s2, 56")
    A("s_cselect_b32 s11, 1, 0")
    A("s_cselect_b32 s3, 56, 0")
    A("s_sub_u32 s2, s2, s3")
    A("s_lshl_b32 s2, s2, 2")
    A("s_add_u32 s2, s2, s10")
    A("v_and_b32 v1, 63, v0")
    A("v_mul_u32_u24 v2, 28672, v1")
    A("s_lshl_b32 s20, s2, 4")
    A("s_waitcnt lgkmcnt(0)")
    A("s_cmp_eq_u32 s11, 1")
    A("s_cselect_b32 s4, s6, s4")
    A("s_cselect_b32 s5, s7, s5")
    srd(A, 12, 4, 512 * 3584)
    srd(A, 16, 8, WSEND)
    for e in range(8):
        A(f"buffer_load_dwordx4 {v(8+4*e,4)}, v2, s[12:15], s20 offen")
        if e < 7: A("s_add_u32 s20, s20, 3584")
    A("s_lshr_b32 s21, s2, 1")
    A("s_mul_i32 s22, s21, 147")
    A("s_lshr_b32 s22, s22, 10")
    A("s_mul_i32 s23, s22, 7")
    A("s_sub_u32 s23, s21, s23")
    A("s_mul_i32 s22, s22, 229376")
    A("s_lshl_b32 s23, s23, 10")
    A("s_add_u32 s22, s22, s23")
    A("s_and_b32 s23, s2, 1")
    A("s_lshl_b32 s23, s23, 6")
    A("s_add_u32 s22, s22, s23")
    A("s_lshl_b32 s23, s11, 8")
    A("s_add_u32 s22, s22, s23")
    A(f"s_add_u32 s22, s22, {W1P:#x}")
    A("v_lshrrev_b32 v3, 1, v1")
    A("v_mul_u32_u24 v3, 7168, v3")
    A("v_and_b32 v4, 1, v1")
    A("v_lshl_add_u32 v3, v4, 9, v3")
    A("s_mov_b32 s21, 0xffff0000")
    F = 40
    for e in range(8):
        A(f"s_waitcnt vmcnt({7-e})")
        for m in range(4):
            A(f"v_lshlrev_b32 v{F+16*m+e}, 16, v{8+4*e+m}")
            A(f"v_and_b32 v{F+16*m+8+e}, s21, v{8+4*e+m}")
    SUM = 8
    for cc in range(8): A(f"v_add_f32 v{SUM+cc}, v{F+8*cc}, v{F+8*cc+1}")
    for e in range(2, 8):
        for cc in range(8): A(f"v_add_f32 v{SUM+cc}, v{SUM+cc}, v{F+8*cc+e}")
    allreduce(A, [SUM + cc for cc in range(8)], [16 + cc for cc in range(8)])
    for cc in range(8): A(f"v_mul_f32 v{SUM+cc}, {fbits(1/512):#x}, v{SUM+cc}")
    for cc in range(8):
        for e in range(8): A(f"v_sub_f32 v{F+8*cc+e}, v{F+8*cc+e}, v{SUM+cc}")
        for m in range(4): A(f"v_cvt_pk_bf16_f32 v{F+8*cc+m}, v{F+8*cc+2*m}, v{F+8*cc+2*m+1}")
        A(f"buffer_store_dwordx4 {v(F+8*cc,4)}, v3, s[16:19], s22 offen offset:{(cc&3)*16 + (cc>>2)*128}")
    A("s_endpgm")

def role_rp2(A):
    A("s_load_dwordx2 s[4:5], s[0:1], 96")
    A("s_load_dwordx2 s[8:9], s[0:1], 120")
    A("v_readfirstlane_b32 s10, v0")
    A("s_lshr_b32 s10, s10, 6")
    A("s_lshl_b32 s2, s2, 2")
    A("s_add_u32 s2, s2, s10")
    A("v_and_b32 v1, 63, v0")
    A("v_lshlrev_b32 v2, 4, v1")
    A("s_lshl_b32 s20, s2, 13")
    A("s_add_u32 s21, s20, 0x1000")
    A("s_waitcnt lgkmcnt(0)")
    srd(A, 12, 4, 1792 * 1024)
    srd(A, 16, 8, WSEND)
    for e in range(8):
        A(f"buffer_load_dwordx4 {v(8+4*e,4)}, v2, s[12:15], s{20 + (e>>2)} offen offset:{(e&3)*1024}")
    A("s_lshl_b32 s22, s2, 9")
    A(f"s_add_u32 s22, s22, {W2P:#x}")
    A("v_lshrrev_b32 v3, 2, v1")
    A("v_mul_u32_u24 v3, 114688, v3")
    A("v_and_b32 v4, 2, v1")
    A("v_lshl_add_u32 v3, v4, 5, v3")
    A("v_and_b32 v4, 1, v1")
    A("v_lshl_add_u32 v3, v4, 8, v3")
    A("s_mov_b32 s23, 0x05040100")
    A("s_mov_b32 s24, 0x07060302")
    A("s_waitcnt vmcnt(0)")
    for cc in range(8):
        for m in range(4):
            A(f"v_perm_b32 v{40+4*cc+m}, v{8+4*(2*m+1)+(cc>>1)}, v{8+4*(2*m)+(cc>>1)}, s{23+(cc&1)}")
        A(f"buffer_store_dwordx4 {v(40+4*cc,4)}, v3, s[16:19], s22 offen offset:{(cc&3)*16 + (cc>>2)*128}")
    A("s_endpgm")

def k_prep(A):
    A("s_cmp_lt_u32 s2, 512"); A("s_cbranch_scc1 L_role_kgen")
    A("s_sub_u32 s2, s2, 512")
    A("s_cmp_lt_u32 s2, 256"); A("s_cbranch_scc1 L_role_ln1")
    A("s_sub_u32 s2, s2, 256")
    A("s_cmp_lt_u32 s2, 112"); A("s_cbranch_scc1 L_role_rp1")
    A("s_sub_u32 s2, s2, 112")
    A("s_cmp_lt_u32 s2, 56"); A("s_cbranch_scc1 L_role_rp2")
    A("L_prep_end:")
    A("s_endpgm")
    A("L_role_kgen:"); role_kgen(A)
    A("L_role_ln1:"); role_ln1(A)
    A("L_role_rp1:"); role_rp1(A)
    A("L_role_rp2:"); role_rp2(A)

KL0, KLS = 128, 4224
UL0, ULS = 8448 + 512, 4608
YL0, YPL = 8448 + 9216, 4096 + 64
CONV_LDS = YL0 + 8 * YPL

def k_conv(A):
    A("s_cmp_ge_u32 s2, 256"); A("s_cbranch_scc1 L_conv_end")
    A("s_load_dwordx2 s[4:5], s[0:1], 120")
    A("s_load_dwordx2 s[6:7], s[0:1], 64")
    A("v_readfirstlane_b32 s20, v0")
    A("s_lshr_b32 s20, s20, 6")
    A("v_lshlrev_b32 v1, 5, v0")
    A("v_and_b32 v2, 63, v0")
    A("v_lshlrev_b32 v3, 4, v2")
    A("s_lshl_b32 s21, s2, 13")
    A("s_lshl_b32 s3, s2, 2")
    A("s_waitcnt lgkmcnt(0)")
    A("s_load_dword s22, s[6:7], s3")
    srd(A, 8, 4, WSEND)
    XR, SR = 8, 16
    A(f"buffer_load_dwordx4 {v(XR,4)}, v1, s[8:11], s21 offen")
    A(f"buffer_load_dwordx4 {v(XR+4,4)}, v1, s[8:11], s21 offen offset:16")
    A(f"s_mov_b32 s23, {ST1:#x}")
    A(f"buffer_load_dwordx4 {v(SR,4)}, v1, s[8:11], s23 offen")
    A(f"buffer_load_dwordx4 {v(SR+4,4)}, v1, s[8:11], s23 offen offset:16")
    A("s_lshr_b32 s24, s20, 1")
    A("s_and_b32 s25, s20, 1")
    A(f"s_mul_i32 s26, s24, {KLS}")
    A("s_lshl_b32 s27, s25, 11")
    A("s_add_u32 s27, s27, s26")
    A(f"s_add_u32 m0, s27, {KL0}")
    A("s_lshl_b32 s27, s20, 11")
    A("s_add_u32 s27, s27, s21")
    A(f"s_add_u32 s27, s27, {KX:#x}")
    A("buffer_load_dwordx4 v3, s[8:11], s27 offen lds")
    A("buffer_load_dwordx4 v3, s[8:11], s27 offen offset:1024 lds")
    A("v_mov_b32 v4, 0"); A("v_mov_b32 v5, 0")
    A("v_lshlrev_b32 v6, 3, v2")
    A(f"ds_write_b64 v6, v[4:5] offset:{UL0-512}")
    A(f"ds_write_b64 v6, v[4:5] offset:{UL0+ULS-512}")
    A("v_and_b32 v6, 0x78, v6")
    A(f"ds_write_b64 v6, v[4:5] offset:{KL0-128}")
    A(f"ds_write_b64 v6, v[4:5] offset:{KL0+KLS-128}")
    VK, VU, VY = 4, 5, 6
    A("v_lshrrev_b32 v7, 4, v2")
    A("v_lshlrev_b32 v24, 5, v7")
    A("v_and_b32 v25, 3, v2")
    A("v_lshl_add_u32 v24, v25, 3, v24")
    A("v_bfe_u32 v25, v2, 2, 2")
    A("v_lshlrev_b32 v25, 3, v25")
    A("v_sub_u32 v24, v24, v25")
    A("s_lshl_b32 s27, s25, 8")
    A("s_add_u32 s27, s27, s26")
    A(f"s_add_u32 s27, s27, {KL0-32}")
    A("s_waitcnt lgkmcnt(0)")
    A(f"v_add_u32 v{VK}, s27, v24")
    A("v_and_b32 v24, 31, v2")
    A("v_lshlrev_b32 v24, 4, v24")
    A("v_lshrrev_b32 v25, 5, v2")
    A("v_lshlrev_b32 v25, 6, v25")
    A("v_sub_u32 v24, v24, v25")
    A(f"s_mul_i32 s27, s24, {ULS}")
    A(f"s_add_u32 s27, s27, {UL0-128}")
    A("s_lshl_b32 s28, s25, 8")
    A("s_sub_u32 s27, s27, s28")
    A(f"v_add_u32 v{VU}, s27, v24")
    A("v_bfe_u32 v24, v2, 4, 1")
    A(f"v_mul_u32_u24 v24, {YPL}, v24")
    A("v_lshrrev_b32 v25, 5, v2")
    A("v_lshl_add_u32 v24, v25, 6, v24")
    A("v_and_b32 v25, 3, v2")
    A("v_lshl_add_u32 v24, v25, 4, v24")
    A("v_bfe_u32 v25, v2, 2, 2")
    A("v_lshl_add_u32 v24, v25, 2, v24")
    A(f"s_mul_i32 s27, s20, {2*YPL}")
    A(f"s_add_u32 s27, s27, {YL0}")
    A(f"v_add_u32 v{VY}, s27, v24")
    A("s_mov_b32 s29, 0xffff0000")
    A("s_lshl_b32 s30, s22, 16")
    A("s_and_b32 s31, s22, s29")
    T = 24
    A("s_waitcnt vmcnt(2)")
    for e in range(8):
        A(f"v_and_b32 v{T+16+e}, s29, v{SR+e}")
        A(f"v_lshlrev_b32 v{SR+e}, 16, v{SR+e}")
        A(f"v_rcp_f32 v{T+16+e}, v{T+16+e}")
        A(f"v_lshlrev_b32 v{T+e}, 16, v{XR+e}")
        A(f"v_and_b32 v{T+8+e}, s29, v{XR+e}")
    for e in range(8):
        A(f"v_sub_f32 v{T+e}, v{T+e}, v{SR+e}")
        A(f"v_sub_f32 v{T+8+e}, v{T+8+e}, v{SR+e}")
    for e in range(8): A(f"v_cvt_pk_bf16_f32 v{SR+e}, v{T+e}, v{T+8+e}")
    for e in range(8):
        A(f"v_lshlrev_b32 v{T+e}, 16, v{SR+e}")
        A(f"v_and_b32 v{T+8+e}, s29, v{SR+e}")
    for e in range(8):
        A(f"v_mul_f32 v{T+e}, v{T+e}, v{T+16+e}")
        A(f"v_mul_f32 v{T+8+e}, v{T+8+e}, v{T+16+e}")
    for m in range(4):
        A(f"v_cvt_pk_bf16_f32 v{SR+m}, v{T+2*m}, v{T+2*m+1}")
        A(f"v_cvt_pk_bf16_f32 v{SR+4+m}, v{T+8+2*m}, v{T+8+2*m+1}")
    A("v_lshlrev_b32 v7, 4, v0")
    A(f"ds_write_b128 v7, {v(SR,4)} offset:{UL0}")
    A(f"ds_write_b128 v7, {v(SR+4,4)} offset:{UL0+ULS}")
    A("s_waitcnt vmcnt(0) lgkmcnt(0)")
    A("s_barrier")
    UF, KF, ACC, TT = 64, 128, 192, 240
    def uf(r, b): return UF + (r * 8 + b) * 4
    def kf(r, a_): return KF + (r * 8 + a_) * 4
    def loads(q):
        out = []
        for r in range(2):
            out.append(f"ds_read_b128 {v(uf(r,q),4)}, v{VU} offset:{512*q + 128*(1-r)}")
            out.append(f"ds_read_b64_tr_b16 {v(kf(r,q),2)}, v{VK} offset:{512*q + 128*r + 32}")
            out.append(f"ds_read_b64_tr_b16 {v(kf(r,q)+2,2)}, v{VK} offset:{512*q + 128*r}")
        return out
    for q in (0, 1):
        for l in loads(q): A(l)
    for m in range(4):
        A(f"v_lshlrev_b32 v{24+2*m}, 16, v{SR+m}"); A(f"v_and_b32 v{25+2*m}, s29, v{SR+m}")
        A(f"v_lshlrev_b32 v{32+2*m}, 16, v{SR+4+m}"); A(f"v_and_b32 v{33+2*m}, s29, v{SR+4+m}")
    for e in range(8):
        A(f"v_mul_f32 v{24+e}, s30, v{24+e}"); A(f"v_mul_f32 v{32+e}, s31, v{32+e}")
    for e in range(8): A(f"v_cvt_pk_bf16_f32 v{SR+e}, v{24+e}, v{32+e}")
    for e in range(8):
        A(f"v_lshlrev_b32 v{24+e}, 16, v{SR+e}"); A(f"v_and_b32 v{32+e}, s29, v{SR+e}")
    ZERO = 252
    A(f"v_mov_b32 v{ZERO}, 0")
    state = {"p3": ZERO, "p2": ZERO, "p1": ZERO, "n": 0}
    def epi(q):
        acc = ACC + 16 * (q % 3)
        ins = []
        t2 = [TT + k for k in range(4)]; t1 = [TT + 4 + k for k in range(4)]; yy = [TT + 8 + k for k in range(4)]
        p3 = [state["p3"]] + [acc + 4 * g + 3 for g in range(3)]
        for g in range(4): ins.append(f"v_add_f32_dpp v{t2[g]}, v{p3[g]}, v{acc+4*g+2} wave_ror:1 {DPP}")
        for g in range(4): ins.append(f"v_add_f32_dpp v{t2[g]}, v{acc+4*g+3}, v{acc+4*g+2} wave_shr:1 {DPP}")
        p2 = [state["p2"]] + t2[:3]
        for g in range(4): ins.append(f"v_add_f32_dpp v{t1[g]}, v{p2[g]}, v{acc+4*g+1} wave_ror:1 {DPP}")
        for g in range(4): ins.append(f"v_add_f32_dpp v{t1[g]}, v{t2[g]}, v{acc+4*g+1} wave_shr:1 {DPP}")
        p1 = [state["p1"]] + t1[:3]
        for g in range(4): ins.append(f"v_add_f32_dpp v{yy[g]}, v{p1[g]}, v{acc+4*g} wave_ror:1 {DPP}")
        for g in range(4): ins.append(f"v_add_f32_dpp v{yy[g]}, v{t1[g]}, v{acc+4*g} wave_shr:1 {DPP}")
        if q < 7:
            ins.append(f"v_mov_b32 v253, v{acc+15}"); ins.append(f"v_mov_b32 v254, v{t2[3]}"); ins.append(f"v_mov_b32 v255, v{t1[3]}")
        for g in range(4): ins.append(f"ds_write_b32 v{VY}, v{yy[g]} offset:{(q*4+g)*128}")
        state.update(p3=253, p2=254, p1=255)
        return ins
    pend = []
    for q in range(8):
        acc = ACC + 16 * (q % 3)
        A("s_waitcnt lgkmcnt(6)" if q == 0 else "s_waitcnt lgkmcnt(0)")
        nxt = loads(q + 1) if 1 <= q < 7 else []
        mf = [(r, a_) for a_ in range(q + 1) for r in range(2)]
        fill = nxt + pend
        per = -(-len(fill) // max(len(mf) - 1, 1))
        for k, (r, a_) in enumerate(mf):
            src = "0" if k == 0 else v(acc, 16)
            A(f"v_mfma_f32_32x32x16_bf16 {v(acc,16)}, {v(uf(r,q-a_),4)}, {v(kf(r,a_),4)}, {src}")
            for _ in range(per):
                if fill: A(fill.pop(0))
        while fill: A(fill.pop(0))
        pend = epi(q)
    for l in pend: A(l)
    A("s_waitcnt lgkmcnt(0)")
    A("s_barrier")
    Y = 64
    for w in range(4):
        for pl in range(2):
            A(f"ds_read_b128 {v(Y+8*w+4*pl,4)}, v7 offset:{YL0 + w*2*YPL + pl*YPL}")
    for e in range(8):
        A(f"v_lshlrev_b32 v{40+e}, 16, v{XR+e}"); A(f"v_and_b32 v{48+e}, s29, v{XR+e}")
    A("s_waitcnt lgkmcnt(0)")
    for e in range(8):
        A(f"v_add_f32 v{Y+e}, v{Y+e}, v{Y+8+e}"); A(f"v_add_f32 v{Y+16+e}, v{Y+16+e}, v{Y+24+e}")
    for e in range(8): A(f"v_cvt_pk_bf16_f32 v{XR+e}, v{Y+e}, v{Y+16+e}")
    for e in range(8):
        A(f"v_lshlrev_b32 v{Y+e}, 16, v{XR+e}"); A(f"v_and_b32 v{Y+16+e}, s29, v{XR+e}")
    for e in range(8):
        A(f"v_add_f32 v{Y+e}, v{Y+e}, v{24+e}"); A(f"v_add_f32 v{Y+16+e}, v{Y+16+e}, v{32+e}")
    for e in range(8): A(f"v_cvt_pk_bf16_f32 v{XR+e}, v{Y+e}, v{Y+16+e}")
    for e in range(8):
        A(f"v_lshlrev_b32 v{Y+e}, 16, v{XR+e}"); A(f"v_and_b32 v{Y+16+e}, s29, v{XR+e}")
    for e in range(8):
        A(f"v_add_f32 v{Y+e}, v{Y+e}, v{40+e}"); A(f"v_add_f32 v{Y+16+e}, v{Y+16+e}, v{48+e}")
    for e in range(8): A(f"v_cvt_pk_bf16_f32 v{XR+e}, v{Y+e}, v{Y+16+e}")
    A(f"s_add_u32 s21, s21, {H2:#x}")
    A(f"buffer_store_dwordx4 {v(XR,4)}, v1, s[8:11], s21 offen")
    A(f"buffer_store_dwordx4 {v(XR+4,4)}, v1, s[8:11], s21 offen offset:16")
    A("L_conv_end:")
    A("s_endpgm")

G1_RING = 5
G1_STAGE = 4 * 7168
def k_gemm1(A):
    A("s_cmp_ge_u32 s2, 256"); A("s_cbranch_scc1 L_g1_end")
    A("s_load_dwordx2 s[4:5], s[0:1], 120")
    A("v_readfirstlane_b32 s20, v0")
    A("s_lshr_b32 s20, s20, 6")
    A("s_and_b32 s21, s2, 1"); A("s_lshl_b32 s21, s21, 3")
    A("s_bfe_u32 s3, s2, 0x30003"); A("s_add_u32 s21, s21, s3")
    A("s_bfe_u32 s22, s2, 0x20001"); A("s_lshl_b32 s22, s22, 2")
    A("s_lshr_b32 s3, s2, 6"); A("s_add_u32 s22, s22, s3")
    A("s_lshl_b32 s23, s21, 2"); A("s_add_u32 s23, s23, s20")
    A("v_and_b32 v1, 63, v0")
    A("v_lshlrev_b32 v2, 4, v1")
    A("v_and_b32 v3, 31, v1")
    A("v_lshlrev_b32 v3, 2, v3")
    A("v_lshrrev_b32 v4, 5, v1")
    A("v_lshl_add_u32 v3, v4, 15, v3")
    for m in range(1, 4): A(f"v_add_u32 v{3+m}, {m*8192:#x}, v3")
    A("s_lshl_b32 s24, s23, 7")
    A(f"s_add_u32 s24, s24, {H2:#x}")
    A("s_mul_i32 s25, s22, 229376")
    A("s_mul_i32 s3, s20, 7168")
    A("s_add_u32 s25, s25, s3")
    A(f"s_add_u32 s25, s25, {W1P:#x}")
    A("s_add_u32 s26, s25, 4096")
    A("s_mov_b32 s27, s3")
    A("s_waitcnt lgkmcnt(0)")
    srd(A, 8, 4, WSEND)
    def issue_stage(st):
        out = []
        slot = st % G1_RING
        out.append(f"s_add_u32 m0, s27, {slot*G1_STAGE}")
        for i in range(4): out.append(f"buffer_load_dwordx4 v2, s[8:11], s25 offen offset:{i*1024} lds")
        out.append(f"s_add_u32 m0, s27, {slot*G1_STAGE+4096}")
        for i in range(3): out.append(f"buffer_load_dwordx4 v2, s[8:11], s26 offen offset:{i*1024} lds")
        out.append(f"s_add_u32 s25, s25, {G1_STAGE}")
        out.append(f"s_add_u32 s26, s26, {G1_STAGE}")
        for ks in range(4):
            for m in range(4): out.append(f"buffer_load_dword a{(st*4+ks)*4+m}, v{3+m}, s[8:11], s24 offen")
            out.append("s_add_u32 s24, s24, 0x10000")
        return out
    A("s_lshl_b32 s28, s22, 17"); A("s_add_u32 s28, s28, s24"); A("s_add_u32 s29, s28, 0x10000")
    for l in issue_stage(0): A(l)
    for ks in range(2):
        for m in range(4): A(f"buffer_load_dword v{8+4*ks+m}, v{3+m}, s[8:11], s{28+ks} offen")
    for l in issue_stage(1): A(l)
    ACC, WF = 32, 144
    def rd(ks, i):
        st = ks // 4
        return f"ds_read_b128 {v(WF + (ks&1)*28 + 4*i, 4)}, v{20 + (st % G1_RING)//2} offset:{((st % G1_RING)%2)*G1_STAGE + (ks%4)*7168 + i*1024}"
    for h in range(3): A(f"v_add_u32 v{20+h}, {h*2*G1_STAGE:#x}, v2")
    for st in range(8):
        if st == 0: A("s_waitcnt vmcnt(31)")
        elif st < 7: A("s_waitcnt vmcnt(23)")
        else: A("s_waitcnt vmcnt(0)")
        A("s_barrier")
        fill = issue_stage(st + 2) if st + 2 < 8 else []
        for i in range(7): A(rd(st * 4, i))
        if st == 1:
            A("s_mov_b32 s30, 0x3f803f80")
            A("v_mov_b32 v16, 0"); A("v_mov_b32 v17, 0")
            for r in range(8): A(f"v_dot2c_f32_bf16 v16, s30, v{8+r}")
            for r in range(8): A(f"v_dot2c_f32_bf16 v17, v{8+r}, v{8+r}")
            A("v_mov_b32 v18, v16"); A("v_mov_b32 v19, v17")
            A("v_permlane32_swap_b32 v16, v18"); A("v_permlane32_swap_b32 v17, v19")
            A("v_add_f32 v16, v16, v18"); A("v_add_f32 v17, v17, v19")
        for k4 in range(4):
            ks = st * 4 + k4
            for i in range(7):
                A(f"s_waitcnt lgkmcnt({6 if k4 < 3 else 6 - i})")
                src = "0" if ks == 0 else v(ACC + 16 * i, 16)
                A(f"v_mfma_f32_32x32x16_bf16 {v(ACC+16*i,16)}, {v(WF + (ks&1)*28 + 4*i, 4)}, {a(ks*4,4)}, {src}")
                if k4 < 3: A(rd(ks + 1, i))
                for _ in range(2):
                    if fill: A(fill.pop(0))
        assert not fill
    A("v_and_b32 v8, 31, v1"); A("v_lshlrev_b32 v8, 7, v8")
    A("s_lshl_b32 s28, s23, 12"); A("s_lshl_b32 s3, s22, 3"); A("s_add_u32 s28, s28, s3")
    A(f"s_add_u32 s28, s28, {ST2:#x}")
    A("s_mov_b32 exec_hi, 0")
    A("buffer_store_dwordx2 v[16:17], v8, s[8:11], s28 offen")
    A("s_mov_b32 exec_hi, -1")
    A("s_mul_i32 s28, s23, 112"); A("s_mul_i32 s3, s22, 7"); A("s_add_u32 s28, s28, s3"); A("s_lshl_b32 s28, s28, 10")
    A(f"s_add_u32 s28, s28, {HH:#x}"); A("s_add_u32 s29, s28, 4096")
    for i in range(7):
        b = ACC + 16 * i
        for r in range(0, 8, 2): A(f"v_pk_mul_f32 {v(b+r,2)}, {v(b+r,2)}, {v(b+8+r,2)}")
        for m in range(4): A(f"v_cvt_pk_bf16_f32 v{b+8+m}, v{b+2*m}, v{b+2*m+1}")
        A(f"buffer_store_dwordx4 {v(b+8,4)}, v2, s[8:11], s{28 + i//4} offen offset:{(i%4)*1024}")
    A("L_g1_end:")
    A("s_endpgm")

G2_RING = 4
G2_STAGE = 32768
def k_gemm2(A):
    A("s_cmp_ge_u32 s2, 256"); A("s_cbranch_scc1 L_g2_end")
    A("s_load_dwordx2 s[4:5], s[0:1], 120")
    A("s_load_dwordx2 s[6:7], s[0:1], 104")
    A("v_readfirstlane_b32 s20, v0")
    A("s_lshr_b32 s20, s20, 6")
    A("s_and_b32 s21, s2, 7"); A("s_lshl_b32 s21, s21, 2")
    A("s_bfe_u32 s3, s2, 0x20003"); A("s_add_u32 s21, s21, s3")
    A("s_lshr_b32 s22, s2, 5")
    A("s_and_b32 s23, s20, 1")
    A("s_lshr_b32 s24, s20, 1")
    A("s_cmp_lt_u32 s20, 2")
    A("s_cselect_b32 s25, s21, s22")
    A(f"s_mov_b32 s26, {W2P:#x}")
    A(f"s_cselect_b32 s26, {HH:#x}, s26")
    A("s_lshl_b32 s25, s25, 1"); A("s_add_u32 s25, s25, s23")
    A("s_mul_i32 s25, s25, 114688"); A("s_add_u32 s25, s25, s26")
    A("s_add_u32 s26, s25, 4096")
    A("s_lshl_b32 s27, s20, 13")
    A("v_and_b32 v1, 63, v0")
    A("v_lshlrev_b32 v2, 4, v1")
    A("s_waitcnt lgkmcnt(0)")
    srd(A, 8, 4, WSEND)
    srd(A, 12, 6, 0x200000)
    def issue_stage(st):
        out = []
        slot = st % G2_RING
        out.append(f"s_add_u32 m0, s27, {slot*G2_STAGE}")
        for i in range(4): out.append(f"buffer_load_dwordx4 v2, s[8:11], s25 offen offset:{i*1024} lds")
        out.append(f"s_add_u32 m0, s27, {slot*G2_STAGE+4096}")
        for i in range(4): out.append(f"buffer_load_dwordx4 v2, s[8:11], s26 offen offset:{i*1024} lds")
        out.append("s_add_u32 s25, s25, 8192"); out.append("s_add_u32 s26, s26, 8192")
        return out
    for l in issue_stage(0): A(l)
    A("s_lshl_b32 s28, s21, 1"); A("s_add_u32 s28, s28, s23")
    A("s_lshl_b32 s29, s22, 1"); A("s_add_u32 s29, s29, s24")
    A("v_and_b32 v3, 31, v1"); A("v_lshrrev_b32 v4, 5, v1")
    A("v_lshlrev_b32 v5, 7, v3"); A("v_lshl_add_u32 v5, v4, 6, v5")
    A("s_lshl_b32 s30, s28, 12"); A(f"s_add_u32 s30, s30, {ST2:#x}")
    for m in range(4): A(f"buffer_load_dwordx4 {v(40+4*m,4)}, v5, s[8:11], s30 offen offset:{16*m}")
    A("v_lshlrev_b32 v6, 2, v3"); A("v_lshl_add_u32 v6, v4, 16, v6")
    A("s_lshl_b32 s30, s29, 17"); A("s_lshl_b32 s3, s28, 7"); A("s_add_u32 s30, s30, s3"); A(f"s_add_u32 s30, s30, {H2:#x}")
    for m in range(8):
        A(f"buffer_load_dword v{56+m}, v6, s[8:11], s30 offen")
        if m < 7: A("s_add_u32 s30, s30, 8192")
    for st in (1, 2):
        for l in issue_stage(st): A(l)
    A("s_lshl_b32 s3, s23, 13"); A("v_add_u32 v8, s3, v2"); A("v_add_u32 v9, 0x10000, v8")
    A("s_lshl_b32 s3, s24, 13"); A("s_add_u32 s3, s3, 16384"); A("v_add_u32 v10, s3, v2"); A("v_add_u32 v11, 0x10000, v10")
    ACC, FR = 16, 64
    def rd(ks):
        st = ks // 8; slot = st % G2_RING; off = (slot % 2) * G2_STAGE + (ks % 8) * 1024
        f = FR + (ks % 4) * 8
        return [f"ds_read_b128 {v(f,4)}, v{10 + slot//2} offset:{off}", f"ds_read_b128 {v(f+4,4)}, v{8 + slot//2} offset:{off}"]
    for st in range(14):
        n_after = min(2, 13 - st) * 8 + (12 if st == 0 else 0)
        A(f"s_waitcnt vmcnt({n_after})")
        A("s_barrier")
        fill = issue_stage(st + 3) if st + 3 < 14 else []
        for ks in range(st * 8, st * 8 + 3):
            for l in rd(ks): A(l)
        for k8 in range(8):
            ks = st * 8 + k8
            if k8 + 3 < 8:
                for l in rd(ks + 3): A(l)
            A(f"s_waitcnt lgkmcnt({2*min(3, 7-k8)})")
            f = FR + (ks % 4) * 8
            src = "0" if ks == 0 else v(ACC, 16)
            A(f"v_mfma_f32_32x32x16_bf16 {v(ACC,16)}, {v(f,4)}, {v(f+4,4)}, {src}")
            for _ in range(2):
                if fill: A(fill.pop(0))
        assert not fill
        if st == 1:
            for m in range(1, 8): A(f"v_pk_add_f32 v[40:41], v[40:41], {v(40+2*m,2)}")
            A("v_mov_b32 v42, v40"); A("v_mov_b32 v43, v41")
            A("v_permlane32_swap_b32 v40, v42"); A("v_permlane32_swap_b32 v41, v43")
            A("v_add_f32 v40, v40, v42"); A("v_add_f32 v41, v41, v43")
            A(f"v_mul_f32 v40, {fbits(1/512):#x}, v40"); A(f"v_mul_f32 v41, {fbits(1/512):#x}, v41")
            A("v_fma_f32 v41, -v40, v40, v41")
            A("v_max_f32 v41, 0, v41")
            A("v_cvt_pk_bf16_f32 v41, v41, v41"); A("v_lshlrev_b32 v41, 16, v41")
            A(f"v_add_f32 v41, {fbits(1e-5):#x}, v41")
            A("v_cvt_pk_bf16_f32 v41, v41, v41"); A("v_lshlrev_b32 v41, 16, v41")
            A("v_sqrt_f32 v41, v41")
            A("v_cvt_pk_bf16_f32 v41, v41, v41"); A("v_lshlrev_b32 v41, 16, v41")
            A("v_rcp_f32 v41, v41")
            A("v_mul_f32 v40, v41, v41")
            A("v_and_b32 v5, 7, v3"); A("v_lshlrev_b32 v5, 12, v5")
            A("v_lshrrev_b32 v6, 3, v3"); A("v_lshl_add_u32 v5, v6, 10, v5")
            A("v_lshl_add_u32 v5, v4, 5, v5")
            A("s_lshl_b32 s30, s28, 15"); A("s_lshl_b32 s3, s29, 6"); A("s_add_u32 s30, s30, s3")
            A("s_mov_b32 s31, 0xffff0000")
            for m in range(8):
                A(f"v_lshlrev_b32 v{96+2*m}, 16, v{56+m}"); A(f"v_and_b32 v{97+2*m}, s31, v{56+m}")
    for r in range(16): A(f"v_mul_f32 v{ACC+r}, v40, v{ACC+r}")
    for m in range(8): A(f"v_cvt_pk_bf16_f32 v{44+m}, v{ACC+2*m}, v{ACC+2*m+1}")
    for m in range(8):
        A(f"v_lshlrev_b32 v{ACC+2*m}, 16, v{44+m}"); A(f"v_and_b32 v{ACC+2*m+1}, s31, v{44+m}")
    for m in range(8): A(f"v_pk_add_f32 {v(ACC+2*m,2)}, {v(ACC+2*m,2)}, {v(96+2*m,2)}")
    for m in range(8): A(f"v_cvt_pk_bf16_f32 v{44+m}, v{ACC+2*m}, v{ACC+2*m+1}")
    A("buffer_store_dwordx4 v[44:47], v5, s[12:15], s30 offen")
    A("buffer_store_dwordx4 v[48:51], v5, s[12:15], s30 offen offset:16")
    A("L_g2_end:")
    A("s_endpgm")

def build(kernels, header):
    A = Asm()
    for h in header: A.raw(h)
    A.raw('.amdgcn_target "amdgcn-amd-amdhsa--gfx950"')
    A.raw(".text")
    for name, fn, nv, acc_off, ns in kernels:
        A.raw(f".globl {name}"); A.raw(".p2align 8"); A.raw(f".type {name},@function"); A.raw(f"{name}:")
        A.hist = []
        fn(A)
    A.raw('.section .rodata,"a"')
    for name, fn, nv, acc_off, ns in kernels:
        A.raw(".p2align 6")
        A.raw(f".amdhsa_kernel {name}")
        A.raw(f"  .amdhsa_next_free_vgpr {nv}")
        A.raw(f"  .amdhsa_next_free_sgpr {ns}")
        A.raw(f"  .amdhsa_accum_offset {acc_off}")
        A.raw("  .amdhsa_group_segment_fixed_size 0")
        A.raw("  .amdhsa_kernarg_size 128")
        A.raw("  .amdhsa_user_sgpr_count 2")
        A.raw("  .amdhsa_user_sgpr_kernarg_segment_ptr 1")
        A.raw("  .amdhsa_system_sgpr_workgroup_id_x 1")
        A.raw(".end_amdhsa_kernel")
    return A.text()

if __name__ == "__main__":
    ref = open(f"cdna_kernels/{NAME}.s.ref").read().splitlines()
    header = [l for l in ref if l.startswith(";") and "@launch" not in l and "Override" not in l and "grid=ceil" not in l][:18]
    header += [
        f"; @launch kernel=prep_kernel grid=(936,1,1) block=(256,1,1) lds={60*PITCH}",
        f"; @launch kernel=conv_kernel grid=(256,1,1) block=(256,1,1) lds={CONV_LDS}",
        f"; @launch kernel=gemm1_kernel grid=(256,1,1) block=(256,1,1) lds={G1_RING*G1_STAGE}",
        f"; @launch kernel=gemm2_kernel grid=(256,1,1) block=(256,1,1) lds={G2_RING*G2_STAGE}",
    ]
    ks = [("prep_kernel", k_prep, 104, 104, 40), ("conv_kernel", k_conv, 256, 256, 40),
          ("gemm1_kernel", k_gemm1, 200 + 128, 200, 40), ("gemm2_kernel", k_gemm2, 112, 112, 40)]
    out = sys.argv[1] if len(sys.argv) > 1 else f"cdna_kernels/{NAME}.s"
    open(out, "w").write(build(ks, header))
    print("wrote", out)
```

```python
import sys, struct
from asmlib import *

NAME = "sequential_preLN__ssm_conv_s4__glu_gated_bilinear__prompt"
EP, ST3, PF, CS, X3, H2, HH, WSEND = 0x0, 0x8000, 0x10000, 0x20000, 0x80000, 0x400000, 0x600000, 0xD00000
DPP = "row_mask:0xf bank_mask:0xf"
OPT = sys.argv
STAMP = "stamp" in OPT
DBGOFF = 0x2000000
LDS_BYTES = 163840
SPIN_MAX = 0x40000
WS_SIZE = 0x4000000 if STAMP else WSEND

def fbits(x): return struct.unpack("<I", struct.pack("<f", x))[0]
def srd(A, d, ptr, nbytes):
    A(f"s_mov_b32 s{d}, s{ptr}")
    A(f"s_and_b32 s{d+1}, s{ptr+1}, 0xffff")
    A(f"s_mov_b32 s{d+2}, {nbytes:#x}")
    A(f"s_mov_b32 s{d+3}, 0x20000")
NST = 14
SGRP = "g" if "sg" in OPT else "a"
def stamp(A, k, g="a"):
    if STAMP and (g == SGRP or k in (0, NST - 1)): A(f"s_memrealtime s[{70+2*k}:{71+2*k}]")
def stamp_begin(A):
    if STAMP:
        for k in range(NST): A(f"s_mov_b64 s[{70+2*k}:{71+2*k}], 0")
        stamp(A, 0)
        A("s_memtime s[98:99]")
def endpgm(A, kid):
    if STAMP:
        A("s_waitcnt vmcnt(0)")
        stamp(A, NST - 1)
        A("s_memtime s[100:101]")
        A("s_waitcnt lgkmcnt(0)")
        A("s_mov_b64 exec, -1")
        A("v_mov_b32 v1, 0")
        for k in range(NST): A(f"v_writelane_b32 v1, s{70+2*k}, {k}")
        A("s_sub_u32 s100, s100, s98")
        A("v_writelane_b32 v1, s100, 14")
        A("v_writelane_b32 v1, s69, 15")
        A("s_lshl_b32 s3, s2, 10"); A("s_lshl_b32 s6, s4, 6"); A("s_add_u32 s3, s3, s6"); A(f"s_add_u32 s3, s3, {DBGOFF + kid*0x100000:#x}")
        A("v_mbcnt_lo_u32_b32 v0, -1, 0"); A("v_mbcnt_hi_u32_b32 v0, -1, v0"); A("v_lshlrev_b32 v0, 2, v0")
        A("s_mov_b64 exec, 0xffff")
        A("buffer_store_dword v1, v0, s[40:43], s3 offen")
    A("s_endpgm")

def cmul_multi(A, items):
    for d, x, y in items: A(f"v_pk_mul_f32 {v(d,2)}, {v(x,2)}, {v(y,2)} op_sel:[0,0] op_sel_hi:[0,1]")
    for d, x, y in items: A(f"v_pk_fma_f32 {v(d,2)}, {v(x,2)}, {v(y,2)}, {v(d,2)} op_sel:[1,1,0] op_sel_hi:[1,0,1] neg_lo:[1,0,0]")
def cexp_multi(A, items, a2, w, tmp):
    for k, (d, e) in enumerate(items):
        A(f"v_mul_f32 v{tmp+k}, {fbits(float(e)):#x}, v{a2}")
        A(f"v_mul_f32 v{d}, {fbits(float(e)):#x}, v{w}")
    for k, (d, e) in enumerate(items):
        A(f"v_exp_f32 v{tmp+k}, v{tmp+k}")
        A(f"v_fract_f32 v{d}, v{d}")
    for k, (d, e) in enumerate(items):
        A(f"v_sin_f32 v{d+1}, v{d}")
        A(f"v_cos_f32 v{d}, v{d}")
    for k, (d, e) in enumerate(items):
        A(f"v_mul_f32 v{d+1}, v{d+1}, v{tmp+k}")
        A(f"v_mul_f32 v{d}, v{d}, v{tmp+k}")

PITCH = 528
KSCR = 64 * PITCH
QROW = 32
STL = 2 * KSCR
def crow(r, hi): return (r & 3) + 8 * (r >> 2) + 4 * hi
PEXP = [[0, 1, 2, 3, 4, 5, 6, 7, 8, 512, 516, 520, 1024, 1032, 1536, 1544],
        [256, 256, 258, 260, 260, 260, 262, 264, 264, 768, 772, 776, 1280, 1288, 1792, 1800]]
PROWS = {}
for hi in range(2):
    for r in range(16): PROWS.setdefault(PEXP[hi][r], []).append(crow(r, hi))

CB = 73728
KP = 4160
KB0, KBS = CB, 4 * KP
UL0, ULS = CB + 2 * KBS + 512, 4608
YL0, YLS = CB + 2 * KBS + 2 * ULS, 8192
assert YL0 + 4 * YLS <= LDS_BYTES

class Cnt:
    def __init__(self, A, name="lgkmcnt", cap=15): self.A = A; self.n = 0; self.done = 0; self.idx = {}; self.name = name; self.cap = cap
    def issue(self, text, key=None):
        self.A(text); self.n += 1
        if key is not None: self.idx[key] = self.n
    def need(self, *keys):
        k = max(self.idx[x] for x in keys)
        if k > self.done:
            left = min(self.n - k, self.cap)
            self.A(f"s_waitcnt {self.name}({left})"); self.done = self.n - left
    def drain(self):
        if self.done < self.n: self.A(f"s_waitcnt {self.name}(0)"); self.done = self.n

def prologue(A, kname, exit_label):
    A("s_cmp_ge_u32 s2, 256"); A(f"s_cbranch_scc1 {exit_label}")
    A("s_load_dwordx16 s[8:23], s[0:1], 0")
    A("s_load_dwordx16 s[24:39], s[0:1], 64")
    stamp_begin(A)
    A("v_readfirstlane_b32 s4, v0")
    A("v_and_b32 v1, 63, v0")
    A("s_lshr_b32 s4, s4, 6")
    A("s_getpc_b64 s[6:7]")
    A(f"L_pc_{kname}:")
    A("s_and_b32 s3, s2, 0xf8"); A("s_add_u32 s3, s3, s4")
    A(f"s_min_u32 s3, s3, (L_end_{kname} - L_pc_{kname}) / 1024 - 1")
    A("s_lshl_b32 s3, s3, 10")
    A("v_lshl_add_u32 v2, v1, 4, s3")
    A("global_load_dwordx4 v[252:255], v2, s[6:7]")

def h_stats(A):
    A("s_waitcnt vmcnt(0)")
    stamp(A, 1)
    for m in range(8):
        A(f"v_dot2c_f32_bf16 v{16+(m&1)}, s64, v{8+m}"); A(f"v_dot2c_f32_bf16 v{18+(m&1)}, v{8+m}, v{8+m}")
    A("v_add_f32 v16, v16, v17"); A("v_add_f32 v18, v18, v19")
    for ctl in ("quad_perm:[1,0,3,2]", "quad_perm:[2,3,0,1]", "row_half_mirror", "row_mirror"):
        A(f"v_add_f32_dpp v16, v16, v16 {ctl} {DPP}"); A(f"v_add_f32_dpp v18, v18, v18 {ctl} {DPP}")
    A("v_add_f32_dpp v16, v16, v16 row_bcast:15 row_mask:0xa bank_mask:0xf"); A("v_add_f32_dpp v18, v18, v18 row_bcast:15 row_mask:0xa bank_mask:0xf")
    A(f"v_mul_f32 v16, {fbits(1/512):#x}, v16"); A(f"v_mul_f32 v18, {fbits(1/512):#x}, v18")
    A("v_fma_f32 v18, -v16, v16, v18"); A("v_max_f32 v18, 0, v18")
    A("v_cvt_pk_bf16_f32 v18, v18, v18"); A("v_lshlrev_b32 v18, 16, v18")
    A(f"v_add_f32 v18, {fbits(1e-5):#x}, v18")
    A("v_cvt_pk_bf16_f32 v18, v18, v18"); A("v_lshlrev_b32 v18, 16, v18")
    A("v_sqrt_f32 v18, v18")
    A("v_cvt_pk_bf16_f32 v16, v16, v18")
    A("s_mov_b32 exec_lo, 0x10000"); A("s_mov_b32 exec_hi, 0x10000")
    A("ds_write_b32 v21, v16")
    A("s_mov_b64 exec, -1")
    A("s_waitcnt lgkmcnt(0)")
    A("s_mul_i32 s5, s5, 0x9e3779b1"); A("s_add_u32 s5, s5, 0x7f4a7c15")
    A("s_barrier")
    A("s_cmp_lg_u32 s4, 7"); A("s_cbranch_scc1 L_nopub")
    A("s_mov_b64 exec, 0xff")
    A("ds_read_b128 v[8:11], v22")
    A("s_waitcnt lgkmcnt(0)")
    A("v_mov_b32 v11, s5")
    A("buffer_store_dwordx4 v[8:11], v7, s[40:43], s59 offen sc1")
    A("s_mov_b64 exec, -1")
    stamp(A, 8)
    A("L_nopub:")

def phase_a(A):
    A("s_and_b32 s56, s2, 7"); A("s_lshr_b32 s57, s2, 3")
    A("v_and_b32 v3, 127, v0")
    A("v_lshrrev_b32 v4, 8, v0")
    A("v_lshl_add_u32 v4, s2, 1, v4")
    A("v_lshlrev_b32 v5, 8, v4"); A("v_lshl_add_u32 v5, v3, 1, v5")
    A("v_lshlrev_b32 v4, 1, v4")
    for r in range(24, 31): A(f"v_mov_b32 v{r}, 0")
    A("s_lshl_b32 s63, s56, 5"); A("s_add_u32 s63, s63, s57")
    A("s_cmp_ge_u32 s4, 4"); A("s_cbranch_scc1 L_a_h")
    A("s_and_b32 s58, s57, 3"); A("s_lshl_b32 s3, s56, 2"); A("s_add_u32 s58, s58, s3")
    A("s_lshr_b32 s59, s57, 2")
    A("v_and_b32 v6, 7, v0"); A("v_lshrrev_b32 v7, 3, v0")
    A("v_lshlrev_b32 v20, 13, v6"); A("v_lshl_add_u32 v20, v7, 2, v20")
    A("s_lshl_b32 s60, s58, 16"); A("s_lshl_b32 s3, s59, 7"); A("s_add_u32 s60, s60, s3")
    A("v_mul_u32_u24 v21, 12288, v7"); A("v_lshl_add_u32 v21, v6, 4, v21")
    A("s_mul_i32 s62, s59, 393216"); A("s_mul_i32 s3, s58, 384"); A("s_add_u32 s62, s62, s3"); A(f"s_add_u32 s62, s62, {X3:#x}")
    A("s_branch L_a_j")
    A("L_a_h:")
    A("s_lshl_b32 s60, s63, 13"); A("s_sub_u32 s3, s4, 4"); A("s_lshl_b32 s3, s3, 11"); A("s_add_u32 s60, s60, s3")
    A("v_lshrrev_b32 v6, 5, v1"); A("v_and_b32 v7, 31, v1")
    A("v_lshlrev_b32 v20, 10, v6"); A("v_lshl_add_u32 v20, v7, 4, v20"); A("v_mov_b32 v21, 0")
    A("L_a_j:")
    A("s_add_u32 s61, s60, 4096")
    A("s_waitcnt lgkmcnt(0)")
    stamp(A, 12)
    A("global_load_short_d16_hi v24, v4, s[22:23]")
    for k in range(2): A(f"global_load_short_d16_hi v{25+k}, v5, s[{10+2*k}:{11+2*k}]")
    A("s_bitcmp0_b32 s4, 1"); A("s_cbranch_scc1 L_a_q")
    for k in range(2, 6): A(f"global_load_short_d16_hi v{25+k}, v5, s[{10+2*k}:{11+2*k}]")
    A("L_a_q:")
    srd(A, 44, 8, 0x200000)
    A("s_cmp_ge_u32 s4, 4"); A("s_cbranch_scc1 L_a_h2")
    A("s_barrier")
    XG = [8, 9, 10, 12, 13, 14, 16, 17]
    for i in range(8): A(f"buffer_load_dword v{XG[i]}, v20, s[44:47], s{60+i//4} offen offset:{1024*(i%4)}")
    A(f"s_load_dword s5, s[38:39], {EP}")
    A("s_waitcnt vmcnt(8)")
    A("s_branch L_a_kgen")
    A("L_a_h2:")
    for n in range(2): A(f"buffer_load_dwordx4 {v(8+4*n,4)}, v20, s[44:47], s60 offen offset:{512*n}")
    A("s_barrier")
    A(f"s_load_dword s5, s[38:39], {EP}")
    A("s_mov_b32 s64, 0x3f803f80")
    for r in range(16, 20): A(f"v_mov_b32 v{r}, 0")
    A("s_sub_u32 s56, s4, 4"); A("v_lshl_add_u32 v21, s56, 1, v6")
    A("v_mul_u32_u24 v22, 43, v21"); A("v_lshrrev_b32 v22, 7, v22"); A("v_add_lshl_u32 v21, v21, v22, 2"); A(f"v_add_u32 v21, {STL:#x}, v21")
    A("v_lshlrev_b32 v7, 4, v1"); A(f"v_add_u32 v22, {STL:#x}, v7")
    A("s_lshl_b32 s59, s63, 7"); A(f"s_add_u32 s59, s59, {ST3:#x}")
    A("s_waitcnt vmcnt(2)")
    A("L_a_kgen:")
    stamp(A, 11)
    srd(A, 40, 38, WS_SIZE)
    A("s_mov_b32 s56, 0x3fb8aa3b"); A("s_mov_b32 s57, 0x32a57060"); A("s_mov_b32 s58, 0x3f317218")
    A("v_mul_f32 v31, s56, v24")
    A("v_fma_f32 v32, v24, s56, -v31")
    A("v_fma_f32 v32, v24, s57, v32")
    A("v_exp_f32 v31, v31")
    A("v_mul_f32 v32, s58, v32")
    A("v_fma_f32 v31, v31, v32, v31")
    A("v_cvt_pk_bf16_f32 v31, v31, v31")
    A("v_lshlrev_b32 v31, 16, v31")
    A("v_mul_f32 v25, v31, v25"); A("v_mul_f32 v26, v31, v26")
    A("v_mul_f32 v25, s56, v25"); A("v_mul_f32 v26, 0.15915494, v26")
    A("s_lshr_b32 s3, s4, 2"); A(f"s_mul_i32 s3, s3, {KSCR}")
    A("s_and_b32 s6, s4, 1"); A("s_lshl_b32 s6, s6, 8"); A("s_add_u32 m0, s3, s6")
    A("s_bitcmp1_b32 s4, 1"); A("s_cbranch_scc1 L_kg_p")
    Z8, C, D = 32, [40, 42, 44, 46], [48, 50, 52, 54]
    cexp_multi(A, [(Z8, 8), (C[1], 64)], 25, 26, 36)
    A(f"v_mov_b32 v{C[0]}, 1.0"); A(f"v_mov_b32 v{C[0]+1}, 0")
    cmul_multi(A, [(C[2], C[1], C[1])]); cmul_multi(A, [(C[3], C[2], C[1])])
    cur, nxt = C, D
    for st in range(8):
        if st < 7: cmul_multi(A, [(nxt[k], cur[k], Z8) for k in range(4)])
        for k in range(4): A(f"v_cvt_pk_bf16_f32 v{56+4*(st&1)+k}, v{cur[k]}, v{cur[k]+1}")
        for k in range(4): A(f"ds_write_addtid_b32 v{56+4*(st&1)+k} offset:{(QROW + 8*k + st) * PITCH}")
        cur, nxt = nxt, cur
    A("s_branch L_kg_join")
    A("L_kg_p:")
    Z1, Z256 = 32, 34
    cexp_multi(A, [(Z1, 1), (Z256, 256)], 25, 26, 36)
    A("v_mul_f32 v38, v31, v27"); A("v_mul_f32 v39, v31, v28")
    A("v_mov_b32 v28, v29"); A("v_mov_b32 v29, v30")
    S = [40 + 2 * k for k in range(9)]
    Zp = {256: Z256, 512: 60, 768: 62, 1024: 64, 1280: 66, 1536: 68, 1792: 70}
    Z2, Z4 = 72, 74
    cmul_multi(A, [(S[0], 28, 38), (Z2, Z1, Z1), (Zp[512], Z256, Z256)])
    cmul_multi(A, [(S[1], S[0], Z1), (S[2], S[0], Z2), (Z4, Z2, Z2), (Zp[768], Zp[512], Z256), (Zp[1024], Zp[512], Zp[512])])
    cmul_multi(A, [(S[3], S[1], Z2), (S[4], S[0], Z4), (S[5], S[1], Z4), (S[6], S[2], Z4), (Zp[1280], Zp[1024], Z256), (Zp[1536], Zp[768], Zp[768]), (Zp[1792], Zp[1024], Zp[768])])
    cmul_multi(A, [(S[7], S[3], Z4), (S[8], S[4], Z4)])
    cnt = [0]
    def putp(lst):
        base = 92 + 10 * (cnt[0] & 1); cnt[0] += 1
        for k, (reg, e) in enumerate(lst): A(f"v_cvt_pk_bf16_f32 v{base+k}, v{reg}, -v{reg+1}")
        for k, (reg, e) in enumerate(lst):
            for row in PROWS[e]: A(f"ds_write_addtid_b32 v{base+k} offset:{row * PITCH}")
    putp([(S[o], o) for o in range(9)])
    rest = [(256, o) for o in (0, 2, 4, 6, 8)] + [(b, o) for b in (512, 768) for o in (0, 4, 8)] + \
           [(b, o) for b in (1024, 1280, 1536, 1792) for o in (0, 8)]
    for c0 in range(0, len(rest), 7):
        ch = rest[c0:c0 + 7]
        cmul_multi(A, [(76 + 2 * k, S[o], Zp[b]) for k, (b, o) in enumerate(ch)])
        putp([(76 + 2 * k, b + o) for k, (b, o) in enumerate(ch)])
    A("L_kg_join:")
    stamp(A, 2)
    A("s_cmp_ge_u32 s4, 4"); A("s_cbranch_scc1 L_a_stats")
    A("s_waitcnt lgkmcnt(0)")
    A("s_mul_i32 s5, s5, 0x9e3779b1"); A("s_add_u32 s5, s5, 0x7f4a7c15")

def poll(A, label, loads, tagregs, inc=1):
    A(f"{label}:")
    for l in loads: A(l)
    A(f"s_add_u32 s69, s69, {inc}")
    A("s_waitcnt vmcnt(0)")
    for r in tagregs: A(f"v_xor_b32 v{r}, s5, v{r}")
    t = list(tagregs)
    while len(t) > 1:
        if len(t) >= 3: A(f"v_or3_b32 v{t[0]}, v{t[0]}, v{t[1]}, v{t[2]}"); t = [t[0]] + t[3:]
        else: A(f"v_or_b32 v{t[0]}, v{t[0]}, v{t[1]}"); t = [t[0]]
    A(f"v_cmp_ne_u32 vcc, 0, v{t[0]}")
    A(f"s_cbranch_vccz {label}_done")
    A(f"s_cmp_lt_u32 s69, {SPIN_MAX}"); A(f"s_cbranch_scc1 {label}")
    A(f"{label}_done:")

def a2_c(A):
    for r in (11, 15, 18, 19): A(f"v_mov_b32 v{r}, s5")
    A("s_waitcnt vmcnt(0)")
    stamp(A, 1)
    for k in range(3): A(f"buffer_store_dwordx4 {v(8+4*k,4)}, v21, s[40:43], s62 offen offset:{128*k} sc1")
    A("s_barrier")
    A("s_lshl_b32 s3, s2, 2"); A("s_load_dword s58, s[24:25], s3")
    A("v_mov_b32 v24, 0"); A("v_mov_b32 v25, 0")
    A("s_and_b32 s60, s4, 1")
    A("s_cmp_ge_u32 s4, 2"); A("s_cbranch_scc1 L_pad_k")
    A(f"s_mul_i32 s3, s60, {ULS}"); A(f"s_add_u32 s3, s3, {UL0-512}"); A("v_lshl_add_u32 v26, v1, 3, s3")
    A("ds_write_b64 v26, v[24:25]")
    A("s_branch L_pad_j")
    A("L_pad_k:")
    A("v_lshrrev_b32 v26, 4, v1"); A(f"v_mul_u32_u24 v26, {KP}, v26"); A("v_and_b32 v27, 15, v1"); A("v_lshl_add_u32 v26, v27, 2, v26")
    A(f"s_mul_i32 s3, s60, {KBS}"); A(f"s_add_u32 s3, s3, {KB0}"); A("v_add_u32 v26, s3, v26")
    A("s_mov_b32 exec_lo, 0x00ff00ff"); A("s_mov_b32 exec_hi, 0x07ff00ff")
    A("ds_write_b32 v26, v24")
    A("s_mov_b64 exec, -1")
    A("L_pad_j:")
    A("v_lshrrev_b32 v2, 3, v0"); A("v_mul_u32_u24 v2, 384, v2"); A("v_and_b32 v3, 7, v0"); A("v_lshl_add_u32 v2, v3, 4, v2")
    A("v_lshrrev_b32 v22, 2, v1"); A("v_lshlrev_b32 v3, 7, v22"); A("v_and_b32 v26, 3, v1"); A("v_lshl_add_u32 v3, v26, 4, v3")
    A("s_lshl_b32 s57, s4, 13"); A(f"s_add_u32 s57, s57, {ST3:#x}"); A("s_add_u32 s64, s57, 4096")
    A("s_mul_i32 s56, s2, 12288"); A(f"s_add_u32 s56, s56, {X3:#x}")
    A("s_lshr_b32 s61, s4, 1")
    A("v_bfe_u32 v27, v1, 2, 2")
    A(f"v_mul_u32_u24 v4, {KP}, v27"); A("v_cmp_eq_u32 vcc, 3, v27"); A("v_cndmask_b32 v27, 0, 8, vcc"); A("v_add_u32 v4, v4, v27")
    A("v_lshl_add_u32 v4, v26, 3, v4")
    A("v_lshrrev_b32 v28, 5, v1"); A("v_lshlrev_b32 v28, 5, v28")
    A("v_and_b32 v29, 16, v1")
    A("v_add_u32 v4, v4, v28"); A("v_sub_u32 v4, v4, v29")
    A(f"s_mul_i32 s62, s61, {KBS}"); A("s_lshl_b32 s63, s60, 8"); A("s_add_u32 s62, s62, s63"); A(f"s_add_u32 s62, s62, {KB0+32-8}")
    A("v_add_u32 v4, s62, v4")
    A("v_and_b32 v5, 15, v1"); A("v_lshlrev_b32 v5, 5, v5"); A("v_sub_u32 v5, v5, v28"); A("v_add_u32 v5, v5, v29")
    A(f"s_mul_i32 s62, s61, {ULS}"); A(f"s_add_u32 s62, s62, {UL0-192}"); A("s_sub_u32 s62, s62, s63")
    A("v_add_u32 v5, s62, v5")
    A(f"s_lshl_b32 s62, s4, 13"); A(f"s_add_u32 s62, s62, {YL0}"); A("v_lshl_add_u32 v6, v1, 4, s62")
    A("v_mul_u32_u24 v23, 80, v1"); A("v_add_u32 v23, s62, v23")
    A("v_mul_u32_u24 v22, 80, v22"); A("v_lshl_add_u32 v22, v26, 4, v22"); A("v_add_u32 v22, s62, v22")
    A(f"v_mov_b32 v7, {CB:#x}"); A("v_lshl_add_u32 v7, v0, 4, v7")
    A("s_mov_b32 s59, 0xffff0000")
    A("s_mov_b32 s69, 0")
    stamp(A, 8)
    poll(A, "L_pollx", [f"buffer_load_dwordx4 {v(24+4*k,4)}, v2, s[40:43], s56 offen offset:{128*k} sc1" for k in range(3)], [27, 31, 35])
    stamp(A, 9)
    XS = [24, 25, 26, 28, 29, 30, 32, 33]; SS = [36, 37, 38, 40, 41, 42, 44, 45]
    poll(A, "L_polls", [f"buffer_load_dwordx4 {v(64+4*n,4)}, v3, s[40:43], s{57 if n < 2 else 64} offen offset:{2048*(n%2)} sc1" for n in range(4)]
         + [x for e in range(8) for x in (f"v_lshlrev_b32 v{48+e}, 16, v{XS[e]}", f"v_and_b32 v{56+e}, s59, v{XS[e]}")],
         [67, 71, 75, 79], inc=0x100 if STAMP else 1)
    stamp(A, 4)
    for n in range(4): A(f"ds_write_b128 v22, {v(64+4*n,4)} offset:{1280*n}")
    for k in range(3): A(f"ds_read_b128 {v(36+4*k,4)}, v23 offset:{16*k}")
    T = 64
    A("s_waitcnt lgkmcnt(0)")
    for e in range(8):
        A(f"v_and_b32 v{T+16+e}, s59, v{SS[e]}")
        A(f"v_lshlrev_b32 v{T+24+e}, 16, v{SS[e]}")
        A(f"v_rcp_f32 v{T+16+e}, v{T+16+e}")
    for e in range(0, 8, 2):
        A(f"v_pk_add_f32 {v(T+e,2)}, {v(48+e,2)}, {v(T+24+e,2)} neg_lo:[0,1] neg_hi:[0,1]")
        A(f"v_pk_add_f32 {v(T+8+e,2)}, {v(56+e,2)}, {v(T+24+e,2)} neg_lo:[0,1] neg_hi:[0,1]")
    for e in range(8): A(f"v_cvt_pk_bf16_f32 v{8+e}, v{T+e}, v{T+8+e}")
    for e in range(8):
        A(f"v_lshlrev_b32 v{T+e}, 16, v{8+e}"); A(f"v_and_b32 v{T+8+e}, s59, v{8+e}")
    for e in range(0, 8, 2):
        A(f"v_pk_mul_f32 {v(T+e,2)}, {v(T+e,2)}, {v(T+16+e,2)}"); A(f"v_pk_mul_f32 {v(T+8+e,2)}, {v(T+8+e,2)}, {v(T+16+e,2)}")
    for m in range(4): A(f"v_cvt_pk_bf16_f32 v{16+m}, v{T+2*m}, v{T+2*m+1}")
    A(f"ds_write_b128 v7, v[16:19] offset:{UL0-CB}")
    for m in range(4): A(f"v_cvt_pk_bf16_f32 v{20+m}, v{T+8+2*m}, v{T+8+2*m+1}")
    A(f"ds_write_b128 v7, v[20:23] offset:{UL0+ULS-CB}")
    A("s_lshl_b32 s60, s58, 16"); A("s_and_b32 s61, s58, s59")
    A("s_waitcnt lgkmcnt(0)")
    stamp(A, 5)
    A("s_barrier")

def a2_h(A):
    A("s_and_b32 s56, s4, 1")
    A("v_and_b32 v2, 31, v1")
    A(f"v_mul_u32_u24 v4, {PITCH}, v2"); A("v_lshl_add_u32 v4, v6, 4, v4")
    A(f"s_mul_i32 s3, s56, {KSCR}"); A("v_add_u32 v4, s3, v4")
    h_stats(A)
    stamp(A, 3)
    L = Cnt(A)
    FA = 32
    def rd(k):
        L.issue(f"ds_read_b128 {v(FA+8*(k%8),4)}, v4 offset:{k*32}")
        L.issue(f"ds_read_b128 {v(FA+8*(k%8)+4,4)}, v4 offset:{QROW*PITCH + k*32}", k)
    for k in range(7): rd(k)
    A("s_bitcmp1_b32 s4, 1")
    A(f"s_cselect_b32 s57, {3*KP+32+8+8}, {32}"); A(f"s_mov_b32 s58, {2*KP+32}"); A(f"s_cselect_b32 s58, {KP+32}, s58")
    A(f"s_mul_i32 s3, s56, {KBS}"); A(f"s_add_u32 s3, s3, {KB0}"); A("s_add_u32 s57, s57, s3"); A("s_add_u32 s58, s58, s3")
    A("v_add_u32 v5, s57, v7"); A("v_add_u32 v12, s58, v7")
    A("v_and_b32 v3, 1, v1"); A("v_cmp_eq_u32 vcc, 1, v3")
    for k in range(16):
        L.need(k)
        A(f"v_mfma_f32_32x32x16_bf16 {v(16,16)}, {v(FA+8*(k%8),4)}, {v(FA+8*(k%8)+4,4)}, {'0' if k == 0 else v(16,16)}")
        if k + 7 < 16: rd(k + 7)
    stamp(A, 4)
    EL = [[16 + o for o in range(9)], [25, 25, 25, 26, 26, 26, 27, 27, 27], [28] * 4 + [8] + [29] * 4, [30] * 4 + [9] + [31] * 4]
    def expand(par):
        A("v_cndmask_b32 v8, v28, v29, vcc"); A("v_cndmask_b32 v9, v30, v31, vcc")
        if par: A("v_cvt_pk_bf16_f32 v48, 0, v16")
        else: A("v_mov_b32 v48, 0")
        for st in range(4):
            e = EL[st]; d = 32 + 4 * st; c = 48 + 4 * st
            for k in (3, 0, 1, 2): A(f"v_cvt_pk_bf16_f32 v{d+k}, v{e[2*k+par]}, v{e[2*k+1+par]}")
            A(f"ds_write_b128 v5, {v(d,4)} offset:{st*1024}")
            if st: A(f"v_mov_b32_dpp v{c}, v{d-1} wave_ror:1 {DPP}")
            for k in range(3): A(f"v_mov_b32 v{c+1+k}, v{d+k}")
            A(f"v_mov_b32_dpp v{c}, v{d+3} wave_shr:1 {DPP}")
            A(f"ds_write_b128 v12, {v(c,4)} offset:{st*1024}")
    A("s_bitcmp1_b32 s4, 1"); A("s_cbranch_scc1 L_exp_odd")
    expand(0)
    A("s_branch L_exp_j")
    A("L_exp_odd:")
    A("s_nop 7"); A("s_nop 3")
    expand(1)
    A("s_mov_b64 exec, 1")
    A("v_subrev_u32 v13, 4, v5")
    A("ds_write_b32 v13, v48")
    A("L_exp_j:")
    A("s_mov_b64 exec, -1")

def conv_c(A):
    VK, VU, VY = 4, 5, 6
    FR, ACC = 64, 192
    def uf(r, b): return FR + (r & 1) * 64 + b * 4
    def kf(r, a_): return FR + (r & 1) * 64 + 32 + a_ * 4
    L = Cnt(A)
    loads = []
    for r in range(4):
        for q in range(8):
            loads.append((r, f"ds_read_b128 {v(uf(r,q),4)}, v{VU} offset:{512*q + 64*(3-r)}", ("u", r, q)))
            loads.append((r, f"ds_read_b64_tr_b16 {v(kf(r,q),2)}, v{VK} offset:{512*q + 64*r + 8}", None))
            loads.append((r, f"ds_read_b64_tr_b16 {v(kf(r,q)+2,2)}, v{VK} offset:{512*q + 64*r}", ("k", r, q)))
    for _ in range(12): L.issue(*loads.pop(0)[1:])
    low = []
    for m in range(4):
        low += [f"v_lshlrev_b32 v{8+2*m}, 16, v{16+m}", f"v_and_b32 v{9+2*m}, s59, v{16+m}", f"v_lshlrev_b32 v{40+2*m}, 16, v{20+m}", f"v_and_b32 v{41+2*m}, s59, v{20+m}"]
    for e in range(8): low += [f"v_mul_f32 v{8+e}, s60, v{8+e}", f"v_mul_f32 v{40+e}, s61, v{40+e}"]
    for e in range(8): low.append(f"v_cvt_pk_bf16_f32 v{16+e}, v{8+e}, v{40+e}")
    for e in range(8): low += [f"v_lshlrev_b32 v{8+e}, 16, v{16+e}", f"v_and_b32 v{40+e}, s59, v{16+e}"]
    low += ["v_lshrrev_b32 v2, 3, v0", "v_lshlrev_b32 v2, 8, v2", "v_and_b32 v3, 7, v0", "v_lshl_add_u32 v2, v3, 4, v2",
            "v_lshrrev_b32 v3, 5, v0", "v_lshlrev_b32 v3, 10, v3", "v_bfe_u32 v24, v0, 1, 4", "v_lshl_add_u32 v3, v24, 4, v3",
            "v_and_b32 v24, 1, v0", "v_lshl_add_u32 v3, v24, 9, v3", f"v_add_u32 v3, {YL0:#x}, v3"]
    started = set(); wr = []; slot = 0
    for r in range(4):
        mf = [(q, a_) for q in range(8) for a_ in range(q + 1)]
        if r < 3: mf.sort(key=lambda t: max(t[1], t[0] - t[1]))
        for q, a_ in mf:
            while ("u", r, q - a_) not in L.idx or ("k", r, a_) not in L.idx: L.issue(*loads.pop(0)[1:])
            L.need(("u", r, q - a_), ("k", r, a_))
            acc = ACC + 4 * q
            A(f"v_mfma_f32_16x16x32_bf16 {v(acc,4)}, {v(kf(r,a_),4)}, {v(uf(r,q-a_),4)}, {v(acc,4) if q in started else '0'}")
            started.add(q); slot += 1
            if r == 3 and a_ == q: wr.append((slot + 5, q))
            if loads and loads[0][0] <= r + 1:
                L.issue(*loads.pop(0)[1:])
                if r == 0 and loads[0][0] == 0: L.issue(*loads.pop(0)[1:])
            elif wr and wr[0][0] <= slot:
                q2 = wr.pop(0)[1]; L.issue(f"ds_write_b128 v{VY}, {v(ACC+4*q2,4)} offset:{1024*q2}")
            else:
                for _ in range(2 if r == 3 else 1):
                    if low: A(low.pop(0))
    for x in low: A(x)
    for _, q2 in wr: L.issue(f"ds_write_b128 v{VY}, {v(ACC+4*q2,4)} offset:{1024*q2}")
    L.drain()
    stamp(A, 6)
    A("s_barrier")
    Y = 64
    for w in range(4):
        for pl in range(2): A(f"ds_read_b128 {v(Y+8*w+4*pl,4)}, v3 offset:{w*YLS + pl*256}")
    A("s_lshl_b32 s56, s2, 13"); A(f"s_add_u32 s56, s56, {H2:#x}")
    A("s_waitcnt lgkmcnt(4)")
    for e in range(0, 8, 2): A(f"v_pk_add_f32 {v(Y+e,2)}, {v(Y+e,2)}, {v(Y+8+e,2)}")
    A("s_waitcnt lgkmcnt(0)")
    A("s_barrier")
    for e in range(0, 8, 2): A(f"v_pk_add_f32 {v(Y+16+e,2)}, {v(Y+16+e,2)}, {v(Y+24+e,2)}")
    for h in range(2):
        es = range(4 * h, 4 * h + 4)
        for a0, a1 in ((8, 40), (48, 56)):
            for e in es: A(f"v_cvt_pk_bf16_f32 v{16+e}, v{Y+e}, v{Y+16+e}")
            for e in es:
                A(f"v_lshlrev_b32 v{Y+e}, 16, v{16+e}"); A(f"v_and_b32 v{Y+16+e}, s59, v{16+e}")
            for e in es[::2]:
                A(f"v_pk_add_f32 {v(Y+e,2)}, {v(Y+e,2)}, {v(a0+e,2)}"); A(f"v_pk_add_f32 {v(Y+16+e,2)}, {v(Y+16+e,2)}, {v(a1+e,2)}")
        for e in es: A(f"v_cvt_pk_bf16_f32 v{16+e}, v{Y+e}, v{Y+16+e}")
        for e in es: A(f"v_min_u32 v{16+e}, -2, v{16+e}")
        A(f"buffer_store_dwordx4 {v(16+4*h,4)}, v2, s[40:43], s56 offen offset:{128*h} sc1")
    stamp(A, 7)

def cs_load(A):
    A("s_min_u32 s59, s2, 223")
    A("s_cmp_ge_u32 s59, 112"); A("s_cselect_b32 s60, 112, 0"); A("s_cselect_b32 s48, s30, s28"); A("s_cselect_b32 s49, s31, s29")
    A("s_cselect_b32 s62, 7168, 0")
    A("s_sub_u32 s59, s59, s60")
    A("s_and_b32 s49, s49, 0xffff"); A(f"s_mov_b32 s50, {512*3584:#x}"); A("s_mov_b32 s51, 0x20000")
    A("s_and_b32 s60, s59, 3"); A("s_lshr_b32 s59, s59, 2")
    A(f"s_mul_i32 s61, s60, {128*3584}"); A("s_lshl_b32 s3, s59, 7"); A("s_add_u32 s61, s61, s3")
    A("s_mul_i32 s60, s60, 14336"); A("s_add_u32 s62, s62, s60"); A("s_lshl_b32 s3, s59, 8"); A("s_add_u32 s62, s62, s3")
    A(f"s_add_u32 s62, s62, {CS:#x}")
    A("v_lshrrev_b32 v126, 3, v1"); A("v_mul_u32_u24 v126, 3584, v126"); A("v_and_b32 v127, 7, v1"); A("v_lshl_add_u32 v126, v127, 4, v126")
    for n in range(16):
        A(f"buffer_load_dwordx4 {v(128+4*n,4)}, v126, s[48:51], s61 offen")
        if n < 15: A(f"s_add_u32 s61, s61, {8*3584}")

def cs_reduce(A):
    A("s_mov_b32 s56, 0xffff0000")
    for n in range(16):
        A(f"s_waitcnt vmcnt({15-n+7})")
        for m in range(4):
            if n == 0:
                A(f"v_lshlrev_b32 v{8+2*m}, 16, v{128+m}"); A(f"v_and_b32 v{9+2*m}, s56, v{128+m}")
            else:
                A(f"v_lshlrev_b32 v{16+m}, 16, v{128+4*n+m}"); A(f"v_and_b32 v{128+4*n+m}, s56, v{128+4*n+m}")
        if n:
            for m in range(4):
                A(f"v_add_f32 v{8+2*m}, v{8+2*m}, v{16+m}"); A(f"v_add_f32 v{9+2*m}, v{9+2*m}, v{128+4*n+m}")
    for r in range(8, 16): A(f"v_add_f32_dpp v{r}, v{r}, v{r} row_ror:8 {DPP}")
    for sw in ("v_permlane16_swap_b32", "v_permlane32_swap_b32"):
        for r in range(8, 16): A(f"v_mov_b32 v{r+8}, v{r}")
        for r in range(8, 16): A(f"{sw} v{r}, v{r+8}")
        for r in range(8, 16): A(f"v_add_f32 v{r}, v{r}, v{r+8}")
    A("v_and_b32 v2, 8, v1"); A("v_cmp_ne_u32 vcc, 0, v2")
    A("v_and_b32 v3, 7, v1"); A("v_lshlrev_b32 v3, 5, v3"); A("v_lshl_add_u32 v3, v2, 1, v3")
    for m in range(4): A(f"v_cndmask_b32 v{8+m}, v{8+m}, v{12+m}, vcc")
    A("s_cmp_ge_u32 s2, 224"); A("s_cbranch_scc1 L_cs_skip")
    A("s_mov_b64 exec, 0xffff")
    A("buffer_store_dwordx4 v[8:11], v3, s[40:43], s62 offen sc1")
    A("s_mov_b64 exec, -1")
    A("L_cs_skip:")


TOK, W1B0, MISC = 98304, 131072, 159744
CA, MB, MF = MISC, MISC + 1024, MISC + 2048
STG = TOK + 4096
RES, RSQ = 114688, 122880
def w1b_addr(ks):
    if ks < 7: return W1B0 + 4096 * ks
    if ks < 31: return 24576 * ((ks - 7) // 6) + 4096 * ((ks - 7) % 6)
    return TOK
def gemm_ids(A):
    A("s_and_b32 s65, s2, 3"); A("s_lshl_b32 s65, s65, 2"); A("s_bfe_u32 s3, s2, 0x20003"); A("s_add_u32 s65, s65, s3")
    A("s_and_b32 s66, s2, 4"); A("s_lshl_b32 s66, s66, 1"); A("s_lshr_b32 s3, s2, 5"); A("s_add_u32 s66, s66, s3")

def h_pre_b2(A):
    gemm_ids(A)
    A("s_cmp_eq_u32 s4, 7"); A("s_cbranch_scc1 L_hj_cs")
    A("s_cmp_eq_u32 s4, 5"); A("s_cbranch_scc1 L_hj_pf")
    A("s_cmp_eq_u32 s4, 6"); A("s_cbranch_scc0 L_hj_done")
    srd(A, 52, 32, 1792 * 1024)
    A("s_mul_i32 s56, s2, 7168"); A("s_add_u32 s57, s56, 4096")
    for n in range(7): A(f"buffer_load_dwordx4 {v(128+4*n,4)}, v7, s[52:55], s{56+n//4} offen offset:{1024*(n%4)}")
    A("s_branch L_hj_done")
    A("L_hj_pf:")
    for r in range(8, 12): A(f"v_mov_b32 v{r}, -1")
    A("s_lshl_b32 s56, s2, 13"); A(f"s_add_u32 s56, s56, {H2:#x}"); A("s_add_u32 s57, s56, 4096")
    for n in range(8): A(f"buffer_store_dwordx4 v[8:11], v7, s[40:43], s{56+n//4} offen offset:{1024*(n%4)} sc1")
    for r in range(12, 16): A(f"v_mov_b32 v{r}, s5")
    A("s_lshl_b32 s56, s2, 7"); A(f"s_add_u32 s56, s56, {PF:#x}")
    A("s_waitcnt vmcnt(0)")
    A("s_mov_b64 exec, 0xff")
    A("buffer_store_dwordx4 v[12:15], v7, s[40:43], s56 offen sc1")
    A("s_mov_b64 exec, -1")
    A("s_branch L_hj_done")
    A("L_hj_cs:")
    cs_load(A)
    A("L_hj_done:")

def w1a_dma(A, V, c):
    for g in range(2):
        A(f"s_add_u32 s3, s60, {(128*c + 32*g) * 3584}")
        for n in range(3):
            A(f"s_add_u32 m0, s61, {24576*c + 3072*g + 1024*n}")
            V.issue(f"buffer_load_dwordx4 v{10+n}, s[48:51], s3 offen lds")
def w1b_dma(A, V, ks):
    A(f"s_add_u32 s3, s62, {16*ks*3584}")
    A(f"s_add_u32 m0, s63, {w1b_addr(ks)}")
    V.issue("buffer_load_dwordx4 v13, s[48:51], s3 offen lds", ("w1b", ks))

def h_conv_time(A):
    for r in range(4, 8): pass
    for r in range(20, 24): A(f"v_mov_b32 v{r}, -1")
    A("s_lshl_b32 s56, s2, 2"); A("s_add_u32 s56, s56, s4"); A("s_sub_u32 s56, s56, 4"); A("s_mul_i32 s56, s56, 7168")
    A(f"s_add_u32 s56, s56, {HH:#x}"); A("s_add_u32 s57, s56, 4096")
    for n in range(7): A(f"buffer_store_dwordx4 v[20:23], v7, s[40:43], s{56+n//4} offen offset:{1024*(n%4)} sc1")
    A("s_cmp_eq_u32 s4, 7"); A("s_cbranch_scc1 L_hc_cs")
    A("s_cmp_eq_u32 s4, 6"); A("s_cbranch_scc0 L_hc_done")
    A("v_lshlrev_b32 v2, 7, v1"); A(f"s_mov_b32 s56, {PF:#x}"); A(f"s_mov_b32 s57, {PF+8192:#x}"); A(f"s_mov_b32 s58, {PF+16384:#x}"); A(f"s_mov_b32 s59, {PF+24576:#x}")
    A("s_mov_b32 s69, 0")
    A("s_waitcnt vmcnt(0)")
    poll(A, "L_pollpf", [f"buffer_load_dword v{24+n}, v2, s[40:43], s{56+n} offen sc1" for n in range(4)], [24, 25, 26, 27])
    A("s_branch L_hc_done")
    A("L_hc_cs:")
    cs_reduce(A)
    A("L_hc_done:")
    A("s_bitcmp1_b32 s4, 1")
    A("s_cselect_b32 s48, s30, s28"); A("s_cselect_b32 s49, s31, s29"); A("s_cselect_b32 s56, 4, 0"); A("s_cselect_b32 s57, 1, 0")
    A("s_and_b32 s49, s49, 0xffff"); A(f"s_mov_b32 s50, {512*3584:#x}"); A("s_mov_b32 s51, 0x20000")
    srd(A, 52, 32, 1792 * 1024)
    A("s_and_b32 s58, s4, 1")
    for n in range(3):
        A(f"v_add_u32 v2, {64*n}, v1"); A("v_mul_u32_u24 v3, 171, v2"); A("v_lshrrev_b32 v3, 10, v3")
        A("v_mul_u32_u24 v4, 6, v3"); A("v_sub_u32 v4, v2, v4")
        A("v_xor_b32 v3, s56, v3"); A("v_mul_u32_u24 v3, 3584, v3"); A(f"v_lshl_add_u32 v{10+n}, v4, 4, v3")
    A(f"s_mul_i32 s60, s58, {64*3584}"); A("s_mul_i32 s3, s66, 96"); A("s_add_u32 s60, s60, s3"); A("s_add_u32 s60, s60, 2048")
    A("s_mul_i32 s61, s57, 12288"); A("s_mul_i32 s3, s58, 6144"); A("s_add_u32 s61, s61, s3")
    A("v_lshrrev_b32 v2, 3, v1"); A("v_and_b32 v3, 7, v1"); A("v_and_b32 v4, 2, v2"); A("v_xor_b32 v3, v3, v4"); A("v_xor_b32 v3, s56, v3")
    A("v_mul_u32_u24 v13, 3584, v2"); A("v_lshl_add_u32 v13, v3, 4, v13")
    A(f"s_mul_i32 s62, s58, {8*3584}"); A("s_lshl_b32 s3, s66, 7"); A("s_add_u32 s62, s62, s3")
    A("s_sub_u32 s63, s4, 4"); A("s_lshl_b32 s63, s63, 10")
    V = Cnt(A, "vmcnt", 63)
    for c in range(3): w1a_dma(A, V, c)
    A("s_waitcnt vmcnt(18)")
    stamp(A, 6)
    A("s_barrier")
    return V

def checked(A, V, label, regs, reload, keys):
    V.need(*keys)
    A(f"{label}:")
    A(f"v_max3_u32 v2, v{regs[0]}, v{regs[1]}, v{regs[2]}"); A(f"v_max3_u32 v3, v{regs[3]}, v{regs[4]}, v{regs[5]}")
    rest = regs[6:]; t = 0
    while rest:
        A(f"v_max3_u32 v{2+t}, v{2+t}, v{rest[0]}, v{rest[1]}"); rest = rest[2:]; t ^= 1
    A("v_max_u32 v2, v2, v3")
    A("v_cmp_eq_u32 vcc, -1, v2")
    A(f"s_cbranch_vccnz {label}_retry")
    A(f"{label}_ok:")
    STUBS.append((label, reload))
STUBS = []
def emit_stubs(A):
    for label, reload in STUBS:
        A(f"{label}_retry:")
        A("s_add_u32 s69, s69, 1"); A(f"s_cmp_gt_u32 s69, {SPIN_MAX}"); A(f"s_cbranch_scc1 {label}_ok")
        for l in reload: A(l)
        A("s_waitcnt vmcnt(0)")
        A(f"s_branch {label}")

def h_gemm(A, V):
    L = Cnt(A)
    w1a_dma(A, V, 3)
    A("v_lshrrev_b32 v2, 3, v1"); A("v_and_b32 v3, 7, v1")
    A("v_lshlrev_b32 v14, 13, v2"); A("v_lshl_add_u32 v14, v3, 4, v14")
    A("s_sub_u32 s56, s4, 4")
    A("s_lshl_b32 s64, s65, 2"); A("s_add_u32 s64, s64, s56"); A("s_lshl_b32 s64, s64, 7"); A(f"s_add_u32 s64, s64, {H2:#x}")
    A("v_lshrrev_b32 v15, 5, v1"); A("v_lshlrev_b32 v15, 9, v15"); A("v_lshl_add_u32 v15, v3, 4, v15")
    A("v_and_b32 v2, 3, v2"); A("v_lshl_add_u32 v15, v2, 2, v15")
    A("s_lshl_b32 s3, s56, 12"); A(f"s_add_u32 s3, s3, {TOK}"); A("v_add_u32 v15, s3, v15")
    A("s_mov_b32 s59, 0xffff0000"); A("s_mov_b32 s69, 0")
    A("s_barrier")
    for ks in range(7): w1b_dma(A, V, ks)
    A("s_barrier")
    stamp(A, 1, "g")
    def tok(n): return [f"s_add_u32 s3, s64, {n*65536}", f"buffer_load_dwordx4 {v(128+4*n,4)}, v14, s[40:43], s3 offen sc1"]
    for n in range(32):
        t = tok(n); A(t[0]); V.issue(t[1], ("t", n))
    sums = []
    for n in range(32):
        for e in range(4):
            r = 128 + 4 * n + e
            if n == 0: sums.append((n, [f"v_lshlrev_b32 v{16+e}, 16, v{r}", f"v_and_b32 v{20+e}, s59, v{r}"]))
            else: sums.append((n, [f"v_lshlrev_b32 v{24+e}, 16, v{r}", f"v_and_b32 v{28+e}, s59, v{r}"]))
        if n:
            for e in range(4): sums.append((n, [f"v_add_f32 v{16+e}, v{16+e}, v{24+e}", f"v_add_f32 v{20+e}, v{20+e}, v{28+e}"]))
    def do_sums(maxn, budget):
        while sums and sums[0][0] <= maxn and budget > 0:
            for x in sums.pop(0)[1]: A(x)
            budget -= 2
    for c in range(8):
        checked(A, V, f"L_tk{c}", list(range(128 + 16 * c, 144 + 16 * c)), [x for n in range(4 * c, 4 * c + 4) for x in tok(n)], [("t", 4 * c + 3)])
        for n in range(4):
            for e in range(4): L.issue(f"ds_write_b32 v15, v{128+16*c+4*n+e} offset:{(c&1)*16384 + n*1024 + e*128}")
        L.drain()
        if c == 0: stamp(A, 2, "g")
        A("s_barrier")
        if c in (3, 5, 7):
            g0 = 7 + 3 * (c - 3)
            for ks in range(g0, g0 + 6): w1b_dma(A, V, ks)
        do_sums(4 * c + 3, 32 if c < 7 else 48)
    A("v_and_b32 v2, 3, v1"); A("v_bfe_u32 v3, v1, 2, 1"); A("v_lshl_add_u32 v2, v3, 3, v2"); A("v_bfe_u32 v3, v1, 3, 1"); A("v_lshl_add_u32 v2, v3, 2, v2")
    A("v_lshlrev_b32 v2, 2, v2"); A("v_bfe_u32 v3, v1, 4, 1"); A("v_mul_u32_u24 v3, 7168, v3"); A("v_add_u32 v2, v2, v3")
    A("v_lshrrev_b32 v3, 5, v1"); A("v_mul_u32_u24 v3, 28672, v3"); A("v_add_u32 v4, v2, v3"); A("v_add_u32 v5, 14336, v4")
    A("s_mul_i32 s57, s66, 192"); A("s_lshl_b32 s3, s56, 6"); A("s_add_u32 s57, s57, s3"); A("s_add_u32 s57, s57, 4096")
    A("s_lshl_b32 s58, s66, 8")
    A("s_cmp_eq_u32 s56, 3"); A("s_cselect_b32 s57, s58, s57")
    A("s_add_u32 s58, s58, s3"); A("s_add_u32 s58, s58, 64")
    A(f"s_add_u32 s57, s57, {CS:#x}"); A(f"s_add_u32 s58, s58, {CS:#x}")
    for t in range(2):
        V.issue(f"buffer_load_dword v{32+2*t}, v4, s[40:43], s{57+t} offen sc1"); V.issue(f"buffer_load_dword v{33+2*t}, v5, s[40:43], s{57+t} offen sc1", ("cs", t))
    V.need(("w1b", 12))
    stamp(A, 3, "g")
    A("s_barrier")
    for ks in range(25, 32): w1b_dma(A, V, ks)
    A("v_lshrrev_b32 v2, 3, v1"); A("v_and_b32 v3, 7, v1"); A("v_and_b32 v6, 2, v2"); A("v_lshlrev_b32 v6, 1, v6"); A("v_xor_b32 v3, v3, v6")
    A("v_lshlrev_b32 v10, 10, v2"); A("v_lshl_add_u32 v10, v3, 4, v10")
    A("s_lshr_b32 s60, s66, 1"); A("s_lshl_b32 s60, s60, 7")
    A(f"s_mul_i32 s61, s56, {12*16384}"); A(f"s_add_u32 s61, s61, {64*16384}"); A("s_add_u32 s61, s61, s60")
    A("s_lshl_b32 s3, s56, 18"); A("s_add_u32 s60, s60, s3")
    A("s_mul_i32 s62, s56, 7168"); A(f"s_add_u32 s62, s62, {STG}"); A("s_mul_i32 s63, s56, 28672")
    order = [("a", i) for i in range(12)] + [("b", 4 * q + i) for q in range(4) for i in range(2)] + [("b", 4 * q + 2 + i) for q in range(4) for i in range(2)]
    def w2_dma(k):
        typ, i = order[k]
        for h in range(2):
            A(f"s_add_u32 s3, s{61 if typ == 'a' else 60}, {i*16384 + h*8192}")
            if k < 14: A(f"s_add_u32 m0, s62, {(k%3)*2048 + h*1024}")
            else: A(f"s_add_u32 m0, s63, {(k-14)*2048 + h*1024}")
            V.issue("buffer_load_dwordx4 v10, s[52:55], s3 offen lds", ("w2", k))
    for k in range(3): w2_dma(k)
    do_sums(31, 10000)
    for e in range(4): A(f"v_add_f32 v{16+e}, v{16+e}, v{20+e}")
    for e in range(4): A(f"v_add_f32_dpp v{16+e}, v{16+e}, v{16+e} row_ror:8 {DPP}")
    for sw in ("v_permlane16_swap_b32", "v_permlane32_swap_b32"):
        for e in range(4): A(f"v_mov_b32 v{20+e}, v{16+e}")
        for e in range(4): A(f"{sw} v{16+e}, v{20+e}")
        for e in range(4): A(f"v_add_f32 v{16+e}, v{16+e}, v{20+e}")
    A("v_bfe_u32 v2, v1, 3, 2")
    for e in range(1, 4):
        A(f"v_cmp_eq_u32 vcc, {e}, v2"); A(f"v_cndmask_b32 v16, v16, v{16+e}, vcc")
    A(f"v_mul_f32 v16, {fbits(1/512):#x}, v16")
    A("v_cvt_pk_bf16_f32 v17, -v16, -v16"); A("v_and_b32 v18, s59, v17"); A("v_add_f32 v18, v18, v16")
    A("v_cvt_pk_bf16_f32 v18, -v18, -v18")
    A("v_cmp_gt_u32 vcc, 32, v1"); A("v_cndmask_b32 v17, v18, v17, vcc")
    A("s_lshl_b32 s3, s56, 8"); A(f"s_add_u32 s3, s3, {MB}"); A("v_lshl_add_u32 v2, v1, 2, s3")
    L.issue("ds_write_b32 v2, v17"); L.issue(f"ds_write_b32 v2, v16 offset:{MF-MB}")
    V.need(("cs", 1))
    for t in range(2): A(f"v_add_f32 v{32+2*t}, v{32+2*t}, v{33+2*t}")
    for t in range(2): A(f"v_mov_b32 v{33+2*t}, v{32+2*t}")
    for t in range(2): A(f"v_permlane32_swap_b32 v{32+2*t}, v{33+2*t}")
    for t in range(2): A(f"v_add_f32 v{32+2*t}, v{32+2*t}, v{33+2*t}")
    for t in range(2): A(f"v_cvt_pk_bf16_f32 v{33+2*t}, v{32+2*t}, v{32+2*t}")
    for t in range(2): A(f"v_and_b32 v{36+t}, s59, v{33+2*t}")
    for t in range(2): A(f"v_sub_f32 v{32+2*t}, v{32+2*t}, v{36+t}")
    for t in range(2): A(f"v_cvt_pk_bf16_f32 v{32+2*t}, v{36+t}, v{32+2*t}")
    A("v_and_b32 v2, 31, v1"); A("s_lshl_b32 s3, s56, 7"); A(f"s_add_u32 s3, s3, {CA}"); A("v_lshl_add_u32 v2, v2, 2, s3")
    L.issue("ds_write_b32 v2, v32"); L.issue("ds_write_b32 v2, v34 offset:512")
    L.drain()
    V.need(("w1b", 18))
    stamp(A, 4, "g")
    A("s_barrier")
    A("v_bfe_u32 v2, v1, 2, 2"); A("v_lshrrev_b32 v3, 5, v1"); A("v_lshl_add_u32 v3, v3, 3, v2"); A("v_lshlrev_b32 v11, 7, v3")
    A("v_lshrrev_b32 v2, 1, v2"); A("s_lshr_b32 s3, s56, 1"); A("v_xor_b32 v2, s3, v2"); A("v_lshl_add_u32 v11, v2, 6, v11")
    A("v_bfe_u32 v2, v1, 4, 1"); A("v_lshl_add_u32 v11, v2, 4, v11")
    A("v_bfe_u32 v2, v1, 1, 1"); A("v_lshl_add_u32 v11, v2, 3, v11")
    A("v_and_b32 v2, 1, v1"); A("v_lshl_add_u32 v11, v2, 5, v11")
    A("v_xor_b32 v12, 64, v11")
    A("v_add_u32 v13, s63, v11"); A("v_add_u32 v14, s63, v12"); A("v_add_u32 v11, s62, v11"); A("v_add_u32 v12, s62, v12")
    def w2_read(k, dst):
        base = (k % 3) * 2048 if k < 14 else (k - 14) * 2048
        for a_ in range(2):
            for h in range(2): L.issue(f"ds_read_b64_tr_b16 {v(dst+4*a_+2*h,2)}, v{(11 if k < 14 else 13)+a_} offset:{base + 512*h}", ("w", k))
    def park(k):
        V.need(("w2", k)); w2_read(k, 128 + 8 * k); L.drain()
        if k + 3 < 14: w2_dma(k + 3)
    for k in range(3): park(k)
    V.need(("w1b", 24))
    A("s_barrier")
    V.need(("w1b", 31))
    A("s_barrier")
    A("s_lshl_b32 s57, s65, 2"); A("s_and_b32 s3, s66, 1"); A("s_lshl_b32 s3, s3, 1"); A("s_add_u32 s57, s57, s3")
    A("s_and_b32 s3, s56, 1"); A("s_add_u32 s58, s57, s3"); A("s_xor_b32 s3, s3, 1"); A("s_add_u32 s57, s57, s3")
    A("s_mul_i32 s58, s58, 114688"); A("s_mul_i32 s57, s57, 114688")
    A("v_add_u32 v8, s58, v7"); A("v_add_u32 v9, s57, v7")
    A("s_mul_i32 s57, s56, 12288"); A(f"s_add_u32 s57, s57, {HH + 65536:#x}"); A("s_lshl_b32 s58, s56, 14"); A(f"s_add_u32 s58, s58, {HH:#x}")
    for k in range(3, 14): park(k)
    stamp(A, 5, "g")
    free = [16, 24, 32, 40, 48, 56]; hslot = {}
    def hh(k):
        typ, i = order[k]
        return [f"s_add_u32 s3, s{57 if typ == 'a' else 58}, {i*1024}"] + [f"buffer_load_dwordx4 {v(hslot[k]+4*b,4)}, v{8+b}, s[40:43], s3 offen sc1" for b in range(2)]
    nh = [0]
    def hh_fill(limit):
        while free and nh[0] < limit:
            k = nh[0]; hslot[k] = free.pop(0); t = hh(k); A(t[0]); V.issue(t[1]); V.issue(t[2], ("h", k)); nh[0] += 1
    hh_fill(28)
    A("s_barrier")
    stamp(A, 6, "g")
    nw = [14]
    def w_fill(n):
        for _ in range(n):
            if nw[0] < 28: w2_dma(nw[0]); nw[0] += 1
    w_fill(6)
    ACC = 64
    for g in range(14):
        ks = (2 * g, 2 * g + 1)
        if g == 10: stamp(A, 7, "g")
        regs = [r for k in ks for r in range(hslot[k], hslot[k] + 8)]
        if ks[0] >= 14:
            V.need(("w2", ks[1]))
            for k in ks: w2_read(k, 240 + 8 * (k & 1))
        checked(A, V, f"L_hh{g}", regs, hh(ks[0]) + hh(ks[1]), [("h", ks[1])])
        for k in ks:
            wr = 128 + 8 * k if k < 14 else 240 + 8 * (k & 1)
            if k >= 14: L.need(("w", k))
            for a_ in range(2):
                for b in range(2):
                    acc = ACC + 16 * (2 * a_ + b)
                    A(f"v_mfma_f32_32x32x16_bf16 {v(acc,16)}, {v(wr+4*a_,4)}, {v(hslot[k]+4*b,4)}, {'0' if k == 0 else v(acc,16)}")
            free.append(hslot[k])
            if k < 14: free.append(wr)
        hh_fill(20 if g < 6 else 28); w_fill(2)
    stamp(A, 8, "g")
    A("v_add_u32 v2, s63, v7")
    for sl in (1, 2, 3):
        for q in range(4): A(f"ds_write_b128 v2, {v(ACC+16*sl+4*q,4)} offset:{sl*4096 + q*1024}")
    for sl in (1, 2, 3):
        A(f"s_xor_b32 s3, s56, {sl}"); A("s_mul_i32 s3, s3, 28672"); A(f"v_add_u32 v{2+sl}, s3, v7")
    A("s_lshl_b32 s3, s56, 11"); A(f"s_add_u32 s3, s3, {RES}"); A("v_add_u32 v6, s3, v7")
    A("s_and_b32 s57, s56, 1"); A("s_lshl_b32 s3, s57, 7"); A(f"s_add_u32 s3, s3, {RSQ}"); A("v_and_b32 v8, 31, v1"); A("v_lshl_add_u32 v8, v8, 2, s3")
    A("v_and_b32 v9, 7, v1"); A("v_lshlrev_b32 v9, 13, v9"); A("v_bfe_u32 v10, v1, 3, 2"); A("v_lshl_add_u32 v9, v10, 10, v9")
    A("v_lshrrev_b32 v10, 5, v1"); A("v_lshl_add_u32 v9, v10, 5, v9")
    A("s_lshl_b32 s58, s65, 1"); A("s_and_b32 s3, s66, 1"); A("s_add_u32 s58, s58, s3"); A("s_lshl_b32 s58, s58, 16")
    A("s_lshl_b32 s3, s57, 12"); A("s_add_u32 s58, s58, s3")
    A("s_lshr_b32 s3, s66, 1"); A("s_lshl_b32 s3, s3, 7"); A("s_add_u32 s58, s58, s3")
    A("s_lshr_b32 s3, s56, 1"); A("s_lshl_b32 s3, s3, 6"); A("s_add_u32 s58, s58, s3")
    srd(A, 44, 34, 0x200000)
    A("s_waitcnt lgkmcnt(0)")
    A("s_barrier")
    stamp(A, 9, "g")
    A("ds_read_b32 v12, v8")
    for h in range(2): A(f"ds_read_b128 {v(16+4*h,4)}, v6 offset:{1024*h}")
    for sl in (1, 2, 3):
        for q in range(4): A(f"ds_read_b128 {v(128+16*sl+4*q,4)}, v{2+sl} offset:{sl*4096 + q*1024}")
    A("s_waitcnt lgkmcnt(12)")
    for m in range(8): A(f"v_lshlrev_b32 v{32+2*m}, 16, v{16+m}"); A(f"v_and_b32 v{33+2*m}, s59, v{16+m}")
    for sl in (1, 2, 3):
        A(f"s_waitcnt lgkmcnt({12-4*sl})")
        for r in range(0, 16, 2): A(f"v_pk_add_f32 {v(ACC+r,2)}, {v(ACC+r,2)}, {v(128+16*sl+r,2)}")
    for h in range(2):
        ms = range(4 * h, 4 * h + 4)
        for m in ms: A(f"v_pk_mul_f32 {v(ACC+2*m,2)}, {v(ACC+2*m,2)}, v[12:13] op_sel_hi:[1,0]")
        for m in ms: A(f"v_cvt_pk_bf16_f32 v{16+m}, v{ACC+2*m}, v{ACC+2*m+1}")
        for m in ms: A(f"v_lshlrev_b32 v{ACC+2*m}, 16, v{16+m}"); A(f"v_and_b32 v{ACC+2*m+1}, s59, v{16+m}")
        for m in ms: A(f"v_pk_add_f32 {v(ACC+2*m,2)}, {v(ACC+2*m,2)}, {v(32+2*m,2)}")
        for m in ms: A(f"v_cvt_pk_bf16_f32 v{16+m}, v{ACC+2*m}, v{ACC+2*m+1}")
        A(f"buffer_store_dwordx4 {v(16+4*h,4)}, v9, s[44:47], s58 offen offset:{16*h}")
    stamp(A, 10, "g")

def c_gemm(A):
    gemm_ids(A)
    A("v_lshlrev_b32 v7, 4, v1")
    A("v_bfe_u32 v24, v1, 4, 1")
    A("v_bfe_u32 v25, v1, 2, 2")
    A("v_lshrrev_b32 v26, 5, v1"); A("v_lshl_add_u32 v26, v26, 3, v25")
    A("v_and_b32 v27, 1, v1"); A("v_lshlrev_b32 v27, 4, v27"); A("v_bfe_u32 v28, v1, 1, 1"); A("v_lshl_add_u32 v27, v28, 3, v27")
    A("v_lshl_add_u32 v28, v24, 2, v26"); A("v_xor_b32 v29, 4, v28")
    A("v_mul_u32_u24 v30, 12288, v24"); A("v_add_u32 v30, v30, v27")
    A("v_mad_u32_u24 v8, v28, 64, v30"); A("v_lshl_add_u32 v8, v28, 5, v8")
    A("v_mad_u32_u24 v9, v29, 64, v30"); A("v_lshl_add_u32 v9, v29, 5, v9")
    A("v_add_u32 v10, 49152, v8"); A("v_add_u32 v11, 49152, v9")
    A("s_lshl_b32 s3, s4, 12"); A(f"s_add_u32 s3, s3, {TOK}"); A("v_add_u32 v12, s3, v7")
    A("v_lshlrev_b32 v13, 11, v24"); A("v_lshl_add_u32 v13, v26, 7, v13"); A("v_add_u32 v13, v13, v27")
    A("v_lshrrev_b32 v25, 1, v25"); A("v_lshl_add_u32 v25, v24, 1, v25"); A("v_lshl_add_u32 v13, v25, 5, v13")
    A("v_and_b32 v14, 31, v1"); A("v_lshlrev_b32 v14, 2, v14"); A(f"v_add_u32 v14, {CA:#x}, v14")
    A("s_lshl_b32 s3, s4, 8"); A(f"s_add_u32 s3, s3, {MB}"); A("v_lshl_add_u32 v15, v1, 2, s3")
    A("s_lshl_b32 s56, s65, 2"); A("s_add_u32 s56, s56, s4"); A("s_mul_i32 s56, s56, 114688"); A(f"s_add_u32 s56, s56, {HH:#x}")
    A("s_mul_i32 s57, s66, 3072"); A("s_add_u32 s57, s57, s56"); A("s_add_u32 s57, s57, 65536")
    A("s_lshl_b32 s3, s66, 12"); A("s_add_u32 s56, s56, s3")
    A("s_waitcnt vmcnt(0)")
    for r in (17, 18, 19, 21, 22, 23): A(f"v_mov_b32 v{r}, 0")
    stamp(A, 1, "g")
    A("s_barrier")
    L = Cnt(A)
    WF, ACC, TK = 24, 48, 128
    def rd1(ks, i):
        c = ks // 8; d = WF + (ks & 1) * 12 + 4 * i
        off = 24576 * (c & 1) + 1536 * (ks & 7) + 32 * i
        return [(f"ds_read_b64_tr_b16 {v(d+2*h,2)}, v{8+2*(c>>1)+h} offset:{off}", ("w", 1, ks, i)) for h in range(2)]
    A("s_barrier")
    stamp(A, 2, "g")
    def tokrd(c):
        for n in range(4): L.issue(f"ds_read_b128 {v(TK+16*c+4*n,4)}, v12 offset:{(c&1)*16384 + n*1024}", ("t", 4 * c + n))
    tokrd(0)
    for i in range(3):
        for x in rd1(0, i): L.issue(*x)
    AB = [[2, 3, 4], [5, 6, 0]]
    def set_ab(t0):
        out = []
        for a_ in range(2):
            out.append(f"v_xor_b32 v{AB[a_][0]}, {32*(t0+a_)}, v13" if 32 * (t0 + a_) else f"v_mov_b32 v{AB[a_][0]}, v13")
            out += [f"v_add_u32 v{AB[a_][w]}, {65536*w:#x}, v{AB[a_][0]}" for w in (1, 2)]
        return out
    def rd2(p, ks, a_):
        ad = w1b_addr(ks); d = WF + (ks % 3) * 8 + 4 * a_
        return [(f"ds_read_b64_tr_b16 {v(d+2*h,2)}, v{AB[a_][ad >> 16]} offset:{(ad & 65535) + 512*h}", ("w", p, ks, a_)) for h in range(2)]
    misc = set_ab(0)
    for ks in range(32):
        if ks % 4 == 3 and ks < 31:
            L.need(("t", ks))
            A("s_barrier")
            tokrd(ks // 4 + 1)
        for i in range(3):
            if ks < 31:
                for x in rd1(ks + 1, i): L.issue(*x)
            L.need(("w", 1, ks, i), ("t", ks))
            A(f"v_mfma_f32_32x32x16_bf16 {v(ACC+16*i,16)}, {v(WF+(ks&1)*12+4*i,4)}, {v(TK+4*ks,4)}, {'0' if ks == 0 else v(ACC+16*i,16)}")
            if misc and ks > 4: A(misc.pop(0))
    stamp(A, 3, "g")
    A("s_barrier")
    def epi(tile, acc, sreg, off):
        ins = [("L", f"ds_read_b32 v16, v14 offset:{128*tile}", ("ca", tile)), ("M", acc, tile), ("gap",)]
        for r in range(8): ins.append(("V", f"v_mul_f32 v{acc+r}, v{acc+r}, v{acc+8+r}"))
        for m in range(4): ins.append(("V", f"v_cvt_pk_bf16_f32 v{acc+8+m}, v{acc+2*m}, v{acc+2*m+1}"))
        for m in range(4): ins.append(("V", f"v_min_u32 v{acc+8+m}, -2, v{acc+8+m}"))
        ins.append(("V", f"buffer_store_dwordx4 {v(acc+8,4)}, v7, s[40:43], s{sreg} offen offset:{off} sc1"))
        return ins
    pend = []; gap = [0]
    def fill(n):
        while n > 0 and pend:
            x = pend[0]
            if x[0] == "gap":
                if gap[0] > 0: gap[0] -= 1; return
                pend.pop(0); continue
            pend.pop(0)
            if x[0] == "L": L.issue(x[1], x[2]); return
            if x[0] == "M":
                L.need(("ca", x[2]), ("mb",))
                A(f"v_mfma_f32_32x32x16_bf16 {v(x[1],16)}, v[16:19], v[20:23], {v(x[1],16)}"); gap[0] = 2; return
            A(x[1]); n -= 1
    for p, accs in ((2, (ACC + 48, ACC + 64)), (3, (ACC, ACC + 16))):
        if p == 2:
            for k0 in (0, 1):
                for a_ in range(2):
                    for x in rd2(p, k0, a_): L.issue(*x)
        for ks in range(32):
            if p == 2 and ks in (11, 17, 23):
                A("s_barrier")
                if ks == 11:
                    stamp(A, 4, "g")
                    L.issue("ds_read_b32 v20, v15", ("mb",))
                    for i in range(3): pend.extend(epi(i, ACC + 16 * i, 57, 1024 * i))
            if p == 2 and ks == 30:
                for x in set_ab(2): A(x)
            if p == 3 and ks == 0:
                while pend: fill(100)
                stamp(A, 5, "g")
            if p == 3 and ks == 2:
                for a_ in range(2): pend.extend(epi(3 + a_, ACC + 48 + 16 * a_, 56, 1024 * a_))
            if p == 3 and ks == 31:
                L.drain(); A("s_barrier")
            for a_ in range(2):
                kn = ks + 2
                if kn < 32:
                    nx = [(x[0].replace(v(WF + (kn % 3) * 8 + 4 * a_ + 2 * h, 2), v(WF + ((kn + (p - 2) * 32) % 3) * 8 + 4 * a_ + 2 * h, 2)), x[1]) for h, x in enumerate(rd2(p, kn, a_))]
                elif p == 2:
                    nx = [(x[0].replace(v(WF + ((kn - 32) % 3) * 8 + 4 * a_ + 2 * h, 2), v(WF + (kn % 3) * 8 + 4 * a_ + 2 * h, 2)), x[1]) for h, x in enumerate(rd2(3, kn - 32, a_))]
                else: nx = []
                for x in nx: L.issue(*x)
                L.need(("w", p, ks, a_))
                wr = WF + ((ks + (p - 2) * 32) % 3) * 8 + 4 * a_
                A(f"v_mfma_f32_32x32x16_bf16 {v(accs[a_],16)}, {v(wr,4)}, {v(TK+4*ks,4)}, {'0' if ks == 0 else v(accs[a_],16)}")
                fill(2)
    while pend: fill(100)
    stamp(A, 6, "g")
    e5, e6 = epi(5, ACC, 56, 2048), epi(6, ACC + 16, 56, 3072)
    L.issue(e5[0][1], e5[0][2]); L.issue("ds_read_b32 v24, v14 offset:768", ("ca", 6))
    for r in (25, 26, 27): A(f"v_mov_b32 v{r}, 0")
    L.drain()
    A(f"v_mfma_f32_32x32x16_bf16 {v(ACC,16)}, v[16:19], v[20:23], {v(ACC,16)}")
    A(f"v_mfma_f32_32x32x16_bf16 {v(ACC+16,16)}, v[24:27], v[20:23], {v(ACC+16,16)}")
    for x in e5[3:] + e6[3:]: A(x[1])
    stamp(A, 7, "g")
    A("v_and_b32 v2, 7, v1"); A("v_lshlrev_b32 v2, 4, v2"); A("v_bfe_u32 v3, v1, 3, 2"); A("v_lshl_add_u32 v2, v3, 2, v2")
    A("v_lshrrev_b32 v3, 5, v1"); A("v_lshl_add_u32 v2, v3, 16, v2")
    A("s_lshl_b32 s57, s65, 2"); A("s_and_b32 s58, s66, 1"); A("s_lshl_b32 s3, s58, 1"); A("s_add_u32 s57, s57, s3"); A("s_and_b32 s3, s4, 1"); A("s_add_u32 s57, s57, s3")
    A("s_lshl_b32 s57, s57, 7"); A("s_lshr_b32 s3, s66, 1"); A("s_lshl_b32 s3, s3, 18"); A("s_add_u32 s57, s57, s3")
    A("s_lshr_b32 s60, s4, 1"); A("s_lshl_b32 s3, s60, 17"); A("s_add_u32 s57, s57, s3"); A(f"s_add_u32 s57, s57, {H2:#x}")
    for m in range(8):
        A(f"buffer_load_dword v{32+m}, v2, s[40:43], s57 offen sc1")
        if m < 7: A("s_add_u32 s57, s57, 8192")
    A("s_cmp_lg_u32 s60, s58"); A("s_cbranch_scc1 L_c_nors")
    A(f"ds_read_b32 v8, v15 offset:{MF-MB}")
    for r in range(4): A(f"v_mov_b32 v{24+r}, 0")
    for r in range(0, 128, 2):
        for q in range(2): A(f"v_lshlrev_b32 v{28+2*q}, 16, v{TK+r+q}"); A(f"v_and_b32 v{29+2*q}, s59, v{TK+r+q}")
        for q in range(4): A(f"v_fmac_f32 v{24+q}, v{28+q}, v{28+q}")
    A("v_add_f32 v24, v24, v25"); A("v_add_f32 v26, v26, v27"); A("v_add_f32 v24, v24, v26")
    A("v_mov_b32 v25, v24"); A("v_permlane32_swap_b32 v24, v25"); A("v_add_f32 v24, v24, v25")
    A("s_waitcnt lgkmcnt(0)")
    A(f"v_mul_f32 v24, {fbits(1/512):#x}, v24"); A("v_fma_f32 v24, -v8, v8, v24"); A("v_max_f32 v24, 0, v24")
    A("v_cvt_pk_bf16_f32 v24, v24, v24"); A("v_lshlrev_b32 v24, 16, v24")
    A(f"v_add_f32 v24, {fbits(1e-5):#x}, v24")
    A("v_cvt_pk_bf16_f32 v24, v24, v24"); A("v_lshlrev_b32 v24, 16, v24")
    A("v_sqrt_f32 v24, v24")
    A("v_cvt_pk_bf16_f32 v24, v24, v24"); A("v_lshlrev_b32 v24, 16, v24")
    A("v_rcp_f32 v24, v24"); A("v_mul_f32 v24, v24, v24")
    A("s_and_b32 s3, s4, 1"); A("s_lshl_b32 s3, s3, 7"); A(f"s_add_u32 s3, s3, {RSQ}"); A("v_and_b32 v2, 31, v1"); A("v_lshl_add_u32 v2, v2, 2, s3")
    A("ds_write_b32 v2, v24")
    A("L_c_nors:")
    A("s_lshl_b32 s3, s4, 11"); A(f"s_add_u32 s3, s3, {RES}"); A("v_add_u32 v2, s3, v7")
    A("s_waitcnt vmcnt(0)")
    for h in range(2): A(f"ds_write_b128 v2, {v(32+4*h,4)} offset:{1024*h}")
    A("s_or_b32 s3, s2, s4"); A("s_cmp_lg_u32 s3, 0"); A("s_cbranch_scc1 L_c_noep")
    A("v_mov_b32 v3, 0"); A("v_mov_b32 v4, s5"); A("s_mov_b64 exec, 1")
    A(f"buffer_store_dword v4, v3, s[40:43], 0 offen offset:{EP} sc1")
    A("s_mov_b64 exec, -1")
    A("L_c_noep:")
    A("s_waitcnt lgkmcnt(0)")
    stamp(A, 8, "g")
    A("s_barrier")

def k_mega(A):
    prologue(A, "k", "L_exit")
    phase_a(A)
    a2_c(A)
    conv_c(A)
    c_gemm(A)
    endpgm(A, 0)
    A("L_a_stats:")
    a2_h(A)
    h_pre_b2(A)
    A("s_waitcnt lgkmcnt(0)")
    stamp(A, 5)
    A("s_barrier")
    V = h_conv_time(A)
    h_gemm(A, V)
    endpgm(A, 0)
    emit_stubs(A)
    A("L_exit:")
    A("s_endpgm")
    A("L_end_k:")

def build(kernels, header):
    A = Asm()
    for h in header: A.raw(h)
    A.raw('.amdgcn_target "amdgcn-amd-amdhsa--gfx950"')
    A.raw(".text")
    for name, fn, nv, acc_off, ns in kernels:
        A.raw(f".globl {name}"); A.raw(".p2align 8"); A.raw(f".type {name},@function"); A.raw(f"{name}:")
        A.hist = []
        fn(A)
    A.raw('.section .rodata,"a"')
    for name, fn, nv, acc_off, ns in kernels:
        A.raw(".p2align 6"); A.raw(f".amdhsa_kernel {name}")
        A.raw(f"  .amdhsa_next_free_vgpr {nv}"); A.raw(f"  .amdhsa_next_free_sgpr {ns}"); A.raw(f"  .amdhsa_accum_offset {acc_off}")
        A.raw("  .amdhsa_group_segment_fixed_size 0"); A.raw("  .amdhsa_kernarg_size 128"); A.raw("  .amdhsa_user_sgpr_count 2")
        A.raw("  .amdhsa_user_sgpr_kernarg_segment_ptr 1"); A.raw("  .amdhsa_system_sgpr_workgroup_id_x 1"); A.raw(".end_amdhsa_kernel")
    return A.text()

if __name__ == "__main__":
    ref = open(f"cdna_kernels/{NAME}.s.ref").read().splitlines()
    header = [l for l in ref if l.startswith(";") and "@launch" not in l and "Override" not in l and "grid=ceil" not in l][:18]
    header += [f"; @launch grid=(256,1,1) block=(512,1,1) lds={LDS_BYTES}"]
    open(sys.argv[1], "w").write(build([(NAME + "_kernel", k_mega, 256, 256, 102)], header))
```

```python
import sys, struct
from asmlib import *

NAME = "sequential_preLN__ssm_conv_s4__glu_gated_bilinear__prompt"
EP, ST3, PF, CS, X3, H2, HH, WSEND = 0x0, 0x8000, 0x10000, 0x20000, 0x80000, 0x400000, 0x600000, 0xD00000
DPP = "row_mask:0xf bank_mask:0xf"
OPT = sys.argv
STAMP = "stamp" in OPT
DBGOFF = 0x2000000
LDS_BYTES = 163840
SPIN_MAX = 0x40000
WS_SIZE = 0x4000000 if STAMP else WSEND

def fbits(x): return struct.unpack("<I", struct.pack("<f", x))[0]
def srd(A, d, ptr, nbytes):
    A(f"s_mov_b32 s{d}, s{ptr}")
    A(f"s_and_b32 s{d+1}, s{ptr+1}, 0xffff")
    A(f"s_mov_b32 s{d+2}, {nbytes:#x}")
    A(f"s_mov_b32 s{d+3}, 0x20000")
NST = 14
SGRP = "g" if "sg" in OPT else "a"
def stamp(A, k, g="a"):
    if STAMP and (g == SGRP or k in (0, NST - 1)): A(f"s_memrealtime s[{70+2*k}:{71+2*k}]")
def stamp_begin(A):
    if STAMP:
        for k in range(NST): A(f"s_mov_b64 s[{70+2*k}:{71+2*k}], 0")
        stamp(A, 0)
        A("s_memtime s[98:99]")
def endpgm(A, kid):
    if STAMP:
        A("s_waitcnt vmcnt(0)")
        stamp(A, NST - 1)
        A("s_memtime s[100:101]")
        A("s_waitcnt lgkmcnt(0)")
        A("s_mov_b64 exec, -1")
        A("v_mov_b32 v1, 0")
        for k in range(NST): A(f"v_writelane_b32 v1, s{70+2*k}, {k}")
        A("s_sub_u32 s100, s100, s98")
        A("v_writelane_b32 v1, s100, 14")
        A("v_writelane_b32 v1, s69, 15")
        A("s_lshl_b32 s3, s2, 10"); A("s_lshl_b32 s6, s4, 6"); A("s_add_u32 s3, s3, s6"); A(f"s_add_u32 s3, s3, {DBGOFF + kid*0x100000:#x}")
        A("v_mbcnt_lo_u32_b32 v0, -1, 0"); A("v_mbcnt_hi_u32_b32 v0, -1, v0"); A("v_lshlrev_b32 v0, 2, v0")
        A("s_mov_b64 exec, 0xffff")
        A("buffer_store_dword v1, v0, s[40:43], s3 offen")
    A("s_endpgm")

MARK = [o[4:] for o in OPT if o.startswith("mark")]
def mark(A, name):
    if name == "start" and MARK: A("s_memrealtime s[70:71]")
    if name in MARK: A("s_memrealtime s[72:73]")
def mark_end(A):
    if MARK:
        A("s_waitcnt vmcnt(0)")
        mark(A, "end")
        A("s_memrealtime s[74:75]"); A("s_waitcnt lgkmcnt(0)")
        A("s_sub_u32 s72, s72, s70"); A("s_lshl_b32 s72, s72, 1")
        A("L_mk:"); A("s_memrealtime s[76:77]"); A("s_waitcnt lgkmcnt(0)"); A("s_sub_u32 s76, s76, s74"); A("s_cmp_lt_u32 s76, s72"); A("s_cbranch_scc1 L_mk")

def cmul_multi(A, items):
    for d, x, y in items: A(f"v_pk_mul_f32 {v(d,2)}, {v(x,2)}, {v(y,2)} op_sel:[0,0] op_sel_hi:[0,1]")
    for d, x, y in items: A(f"v_pk_fma_f32 {v(d,2)}, {v(x,2)}, {v(y,2)}, {v(d,2)} op_sel:[1,1,0] op_sel_hi:[1,0,1] neg_lo:[1,0,0]")
def cexp_multi(A, items, a2, w, tmp):
    for k, (d, e) in enumerate(items):
        A(f"v_mul_f32 v{tmp+k}, {fbits(float(e)):#x}, v{a2}")
        A(f"v_mul_f32 v{d}, {fbits(float(e)):#x}, v{w}")
    for k, (d, e) in enumerate(items):
        A(f"v_exp_f32 v{tmp+k}, v{tmp+k}")
        A(f"v_fract_f32 v{d}, v{d}")
    for k, (d, e) in enumerate(items):
        A(f"v_sin_f32 v{d+1}, v{d}")
        A(f"v_cos_f32 v{d}, v{d}")
    for k, (d, e) in enumerate(items):
        A(f"v_mul_f32 v{d+1}, v{d+1}, v{tmp+k}")
        A(f"v_mul_f32 v{d}, v{d}, v{tmp+k}")

PITCH = 528
KSCR = 64 * PITCH
QROW = 32
STL = 2 * KSCR
def crow(r, hi): return (r & 3) + 8 * (r >> 2) + 4 * hi
PEXP = [[0, 1, 2, 3, 4, 5, 6, 7, 8, 512, 516, 520, 1024, 1032, 1536, 1544],
        [256, 256, 258, 260, 260, 260, 262, 264, 264, 768, 772, 776, 1280, 1288, 1792, 1800]]
PROWS = {}
for hi in range(2):
    for r in range(16): PROWS.setdefault(PEXP[hi][r], []).append(crow(r, hi))

CB = 73728
KP = 4160
KB0, KBS = CB, 4 * KP
UL0, ULS = CB + 2 * KBS + 512, 4608
YL0, YLS = CB + 2 * KBS + 2 * ULS, 8192
assert YL0 + 4 * YLS <= LDS_BYTES

class Cnt:
    def __init__(self, A, name="lgkmcnt", cap=15): self.A = A; self.n = 0; self.done = 0; self.idx = {}; self.name = name; self.cap = cap
    def issue(self, text, key=None):
        self.A(text); self.n += 1
        if key is not None: self.idx[key] = self.n
    def need(self, *keys):
        k = max(self.idx[x] for x in keys)
        if k > self.done:
            left = min(self.n - k, self.cap)
            self.A(f"s_waitcnt {self.name}({left})"); self.done = self.n - left
    def drain(self):
        if self.done < self.n: self.A(f"s_waitcnt {self.name}(0)"); self.done = self.n

def prologue(A, kname, exit_label):
    A("s_cmp_ge_u32 s2, 256"); A(f"s_cbranch_scc1 {exit_label}")
    A("s_load_dwordx16 s[8:23], s[0:1], 0")
    A("s_load_dwordx16 s[24:39], s[0:1], 64")
    stamp_begin(A)
    mark(A, "start")
    A("v_readfirstlane_b32 s4, v0")
    A("v_and_b32 v1, 63, v0")
    A("s_lshr_b32 s4, s4, 6")
    A("s_getpc_b64 s[6:7]")
    A(f"L_pc_{kname}:")
    A("s_and_b32 s3, s2, 0xf8"); A("s_add_u32 s3, s3, s4")
    A(f"s_min_u32 s3, s3, (L_end_{kname} - L_pc_{kname}) / 1024 - 1")
    A("s_lshl_b32 s3, s3, 10")
    A("v_lshl_add_u32 v2, v1, 4, s3")
    A("global_load_dwordx4 v[252:255], v2, s[6:7]")

def h_stats(A):
    A("s_waitcnt vmcnt(0)")
    stamp(A, 1)
    for m in range(8):
        A(f"v_dot2c_f32_bf16 v{16+(m&1)}, s64, v{8+m}"); A(f"v_dot2c_f32_bf16 v{18+(m&1)}, v{8+m}, v{8+m}")
    A("v_add_f32 v16, v16, v17"); A("v_add_f32 v18, v18, v19")
    for ctl in ("quad_perm:[1,0,3,2]", "quad_perm:[2,3,0,1]", "row_half_mirror", "row_mirror"):
        A(f"v_add_f32_dpp v16, v16, v16 {ctl} {DPP}"); A(f"v_add_f32_dpp v18, v18, v18 {ctl} {DPP}")
    A("v_add_f32_dpp v16, v16, v16 row_bcast:15 row_mask:0xa bank_mask:0xf"); A("v_add_f32_dpp v18, v18, v18 row_bcast:15 row_mask:0xa bank_mask:0xf")
    A(f"v_mul_f32 v16, {fbits(1/512):#x}, v16"); A(f"v_mul_f32 v18, {fbits(1/512):#x}, v18")
    A("v_fma_f32 v18, -v16, v16, v18"); A("v_max_f32 v18, 0, v18")
    A("v_cvt_pk_bf16_f32 v18, v18, v18"); A("v_lshlrev_b32 v18, 16, v18")
    A(f"v_add_f32 v18, {fbits(1e-5):#x}, v18")
    A("v_cvt_pk_bf16_f32 v18, v18, v18"); A("v_lshlrev_b32 v18, 16, v18")
    A("v_sqrt_f32 v18, v18")
    A("v_cvt_pk_bf16_f32 v16, v16, v18")
    A("s_mov_b32 exec_lo, 0x10000"); A("s_mov_b32 exec_hi, 0x10000")
    A("ds_write_b32 v21, v16")
    A("s_mov_b64 exec, -1")
    A("s_waitcnt lgkmcnt(0)")
    A("s_mul_i32 s5, s5, 0x9e3779b1"); A("s_add_u32 s5, s5, 0x7f4a7c15")
    A("s_barrier")
    A("s_cmp_lg_u32 s4, 7"); A("s_cbranch_scc1 L_nopub")
    A("s_mov_b64 exec, 0xff")
    A("ds_read_b128 v[8:11], v22")
    A("s_waitcnt lgkmcnt(0)")
    A("v_mov_b32 v11, s5")
    A("buffer_store_dwordx4 v[8:11], v7, s[40:43], s59 offen sc1")
    A("s_mov_b64 exec, -1")
    stamp(A, 8)
    A("L_nopub:")

def phase_a(A):
    A("s_and_b32 s56, s2, 7"); A("s_lshr_b32 s57, s2, 3")
    A("v_and_b32 v3, 127, v0")
    A("v_lshrrev_b32 v4, 8, v0")
    A("v_lshl_add_u32 v4, s2, 1, v4")
    A("v_lshlrev_b32 v5, 8, v4"); A("v_lshl_add_u32 v5, v3, 1, v5")
    A("v_lshlrev_b32 v4, 1, v4")
    for r in range(24, 31): A(f"v_mov_b32 v{r}, 0")
    A("s_lshl_b32 s63, s56, 5"); A("s_add_u32 s63, s63, s57")
    A("s_cmp_ge_u32 s4, 4"); A("s_cbranch_scc1 L_a_h")
    A("s_and_b32 s58, s57, 3"); A("s_lshl_b32 s3, s56, 2"); A("s_add_u32 s58, s58, s3")
    A("s_lshr_b32 s59, s57, 2")
    A("v_and_b32 v6, 7, v0"); A("v_lshrrev_b32 v7, 3, v0")
    A("v_lshlrev_b32 v20, 13, v6"); A("v_lshl_add_u32 v20, v7, 2, v20")
    A("s_lshl_b32 s60, s58, 16"); A("s_lshl_b32 s3, s59, 7"); A("s_add_u32 s60, s60, s3")
    A("v_mul_u32_u24 v21, 12288, v7"); A("v_lshl_add_u32 v21, v6, 4, v21")
    A("s_mul_i32 s62, s59, 393216"); A("s_mul_i32 s3, s58, 384"); A("s_add_u32 s62, s62, s3"); A(f"s_add_u32 s62, s62, {X3:#x}")
    A("s_branch L_a_j")
    A("L_a_h:")
    A("s_lshl_b32 s60, s63, 13"); A("s_sub_u32 s3, s4, 4"); A("s_lshl_b32 s3, s3, 11"); A("s_add_u32 s60, s60, s3")
    A("v_lshrrev_b32 v6, 5, v1"); A("v_and_b32 v7, 31, v1")
    A("v_lshlrev_b32 v20, 10, v6"); A("v_lshl_add_u32 v20, v7, 4, v20"); A("v_mov_b32 v21, 0")
    A("L_a_j:")
    A("s_add_u32 s61, s60, 4096")
    A("s_waitcnt lgkmcnt(0)")
    stamp(A, 12)
    A("global_load_short_d16_hi v24, v4, s[22:23]")
    for k in range(2): A(f"global_load_short_d16_hi v{25+k}, v5, s[{10+2*k}:{11+2*k}]")
    A("s_bitcmp0_b32 s4, 1"); A("s_cbranch_scc1 L_a_q")
    for k in range(2, 6): A(f"global_load_short_d16_hi v{25+k}, v5, s[{10+2*k}:{11+2*k}]")
    A("L_a_q:")
    srd(A, 44, 8, 0x200000)
    A("s_cmp_ge_u32 s4, 4"); A("s_cbranch_scc1 L_a_h2")
    A("s_barrier")
    XG = [8, 9, 10, 12, 13, 14, 16, 17]
    for i in range(8): A(f"buffer_load_dword v{XG[i]}, v20, s[44:47], s{60+i//4} offen offset:{1024*(i%4)}")
    A(f"s_load_dword s5, s[38:39], {EP}")
    A("s_waitcnt vmcnt(8)")
    A("s_branch L_a_kgen")
    A("L_a_h2:")
    for n in range(2): A(f"buffer_load_dwordx4 {v(8+4*n,4)}, v20, s[44:47], s60 offen offset:{512*n}")
    A("s_barrier")
    A(f"s_load_dword s5, s[38:39], {EP}")
    A("s_mov_b32 s64, 0x3f803f80")
    for r in range(16, 20): A(f"v_mov_b32 v{r}, 0")
    A("s_sub_u32 s56, s4, 4"); A("v_lshl_add_u32 v21, s56, 1, v6")
    A("v_mul_u32_u24 v22, 43, v21"); A("v_lshrrev_b32 v22, 7, v22"); A("v_add_lshl_u32 v21, v21, v22, 2"); A(f"v_add_u32 v21, {STL:#x}, v21")
    A("v_lshlrev_b32 v7, 4, v1"); A(f"v_add_u32 v22, {STL:#x}, v7")
    A("s_lshl_b32 s59, s63, 7"); A(f"s_add_u32 s59, s59, {ST3:#x}")
    A("s_waitcnt vmcnt(2)")
    A("L_a_kgen:")
    stamp(A, 11)
    srd(A, 40, 38, WS_SIZE)
    A("s_mov_b32 s56, 0x3fb8aa3b"); A("s_mov_b32 s57, 0x32a57060"); A("s_mov_b32 s58, 0x3f317218")
    A("v_mul_f32 v31, s56, v24")
    A("v_fma_f32 v32, v24, s56, -v31")
    A("v_fma_f32 v32, v24, s57, v32")
    A("v_exp_f32 v31, v31")
    A("v_mul_f32 v32, s58, v32")
    A("v_fma_f32 v31, v31, v32, v31")
    A("v_cvt_pk_bf16_f32 v31, v31, v31")
    A("v_lshlrev_b32 v31, 16, v31")
    A("v_mul_f32 v25, v31, v25"); A("v_mul_f32 v26, v31, v26")
    A("v_mul_f32 v25, s56, v25"); A("v_mul_f32 v26, 0.15915494, v26")
    A("s_lshr_b32 s3, s4, 2"); A(f"s_mul_i32 s3, s3, {KSCR}")
    A("s_and_b32 s6, s4, 1"); A("s_lshl_b32 s6, s6, 8"); A("s_add_u32 m0, s3, s6")
    A("s_bitcmp1_b32 s4, 1"); A("s_cbranch_scc1 L_kg_p")
    Z8, C, D = 32, [40, 42, 44, 46], [48, 50, 52, 54]
    cexp_multi(A, [(Z8, 8), (C[1], 64)], 25, 26, 36)
    A(f"v_mov_b32 v{C[0]}, 1.0"); A(f"v_mov_b32 v{C[0]+1}, 0")
    cmul_multi(A, [(C[2], C[1], C[1])]); cmul_multi(A, [(C[3], C[2], C[1])])
    cur, nxt = C, D
    for st in range(8):
        if st < 7: cmul_multi(A, [(nxt[k], cur[k], Z8) for k in range(4)])
        for k in range(4): A(f"v_cvt_pk_bf16_f32 v{56+4*(st&1)+k}, v{cur[k]}, v{cur[k]+1}")
        for k in range(4): A(f"ds_write_addtid_b32 v{56+4*(st&1)+k} offset:{(QROW + 8*k + st) * PITCH}")
        cur, nxt = nxt, cur
    A("s_branch L_kg_join")
    A("L_kg_p:")
    Z1, Z256 = 32, 34
    cexp_multi(A, [(Z1, 1), (Z256, 256)], 25, 26, 36)
    A("v_mul_f32 v38, v31, v27"); A("v_mul_f32 v39, v31, v28")
    A("v_mov_b32 v28, v29"); A("v_mov_b32 v29, v30")
    S = [40 + 2 * k for k in range(9)]
    Zp = {256: Z256, 512: 60, 768: 62, 1024: 64, 1280: 66, 1536: 68, 1792: 70}
    Z2, Z4 = 72, 74
    cmul_multi(A, [(S[0], 28, 38), (Z2, Z1, Z1), (Zp[512], Z256, Z256)])
    cmul_multi(A, [(S[1], S[0], Z1), (S[2], S[0], Z2), (Z4, Z2, Z2), (Zp[768], Zp[512], Z256), (Zp[1024], Zp[512], Zp[512])])
    cmul_multi(A, [(S[3], S[1], Z2), (S[4], S[0], Z4), (S[5], S[1], Z4), (S[6], S[2], Z4), (Zp[1280], Zp[1024], Z256), (Zp[1536], Zp[768], Zp[768]), (Zp[1792], Zp[1024], Zp[768])])
    cmul_multi(A, [(S[7], S[3], Z4), (S[8], S[4], Z4)])
    cnt = [0]
    def putp(lst):
        base = 92 + 10 * (cnt[0] & 1); cnt[0] += 1
        for k, (reg, e) in enumerate(lst): A(f"v_cvt_pk_bf16_f32 v{base+k}, v{reg}, -v{reg+1}")
        for k, (reg, e) in enumerate(lst):
            for row in PROWS[e]: A(f"ds_write_addtid_b32 v{base+k} offset:{row * PITCH}")
    putp([(S[o], o) for o in range(9)])
    rest = [(256, o) for o in (0, 2, 4, 6, 8)] + [(b, o) for b in (512, 768) for o in (0, 4, 8)] + \
           [(b, o) for b in (1024, 1280, 1536, 1792) for o in (0, 8)]
    for c0 in range(0, len(rest), 7):
        ch = rest[c0:c0 + 7]
        cmul_multi(A, [(76 + 2 * k, S[o], Zp[b]) for k, (b, o) in enumerate(ch)])
        putp([(76 + 2 * k, b + o) for k, (b, o) in enumerate(ch)])
    A("L_kg_join:")
    stamp(A, 2)
    A("s_cmp_ge_u32 s4, 4"); A("s_cbranch_scc1 L_a_stats")
    A("s_waitcnt lgkmcnt(0)")
    A("s_mul_i32 s5, s5, 0x9e3779b1"); A("s_add_u32 s5, s5, 0x7f4a7c15")

def poll(A, label, loads, tagregs, inc=1):
    A(f"{label}:")
    for l in loads: A(l)
    A(f"s_add_u32 s69, s69, {inc}")
    A("s_waitcnt vmcnt(0)")
    for r in tagregs: A(f"v_xor_b32 v{r}, s5, v{r}")
    t = list(tagregs)
    while len(t) > 1:
        if len(t) >= 3: A(f"v_or3_b32 v{t[0]}, v{t[0]}, v{t[1]}, v{t[2]}"); t = [t[0]] + t[3:]
        else: A(f"v_or_b32 v{t[0]}, v{t[0]}, v{t[1]}"); t = [t[0]]
    A(f"v_cmp_ne_u32 vcc, 0, v{t[0]}")
    A(f"s_cbranch_vccz {label}_done")
    A(f"s_cmp_lt_u32 s69, {SPIN_MAX}"); A(f"s_cbranch_scc1 {label}")
    A(f"{label}_done:")

def a2_c(A):
    for r in (11, 15, 18, 19): A(f"v_mov_b32 v{r}, s5")
    A("s_waitcnt vmcnt(0)")
    stamp(A, 1)
    for k in range(3): A(f"buffer_store_dwordx4 {v(8+4*k,4)}, v21, s[40:43], s62 offen offset:{128*k} sc1")
    A("s_barrier")
    A("s_lshl_b32 s3, s2, 2"); A("s_load_dword s58, s[24:25], s3")
    A("v_mov_b32 v24, 0"); A("v_mov_b32 v25, 0")
    A("s_and_b32 s60, s4, 1")
    A("s_cmp_ge_u32 s4, 2"); A("s_cbranch_scc1 L_pad_k")
    A(f"s_mul_i32 s3, s60, {ULS}"); A(f"s_add_u32 s3, s3, {UL0-512}"); A("v_lshl_add_u32 v26, v1, 3, s3")
    A("ds_write_b64 v26, v[24:25]")
    A("s_branch L_pad_j")
    A("L_pad_k:")
    A("v_lshrrev_b32 v26, 4, v1"); A(f"v_mul_u32_u24 v26, {KP}, v26"); A("v_and_b32 v27, 15, v1"); A("v_lshl_add_u32 v26, v27, 2, v26")
    A(f"s_mul_i32 s3, s60, {KBS}"); A(f"s_add_u32 s3, s3, {KB0}"); A("v_add_u32 v26, s3, v26")
    A("s_mov_b32 exec_lo, 0x00ff00ff"); A("s_mov_b32 exec_hi, 0x07ff00ff")
    A("ds_write_b32 v26, v24")
    A("s_mov_b64 exec, -1")
    A("L_pad_j:")
    A("v_lshrrev_b32 v2, 3, v0"); A("v_mul_u32_u24 v2, 384, v2"); A("v_and_b32 v3, 7, v0"); A("v_lshl_add_u32 v2, v3, 4, v2")
    A("v_lshrrev_b32 v22, 2, v1"); A("v_lshlrev_b32 v3, 7, v22"); A("v_and_b32 v26, 3, v1"); A("v_lshl_add_u32 v3, v26, 4, v3")
    A("s_lshl_b32 s57, s4, 13"); A(f"s_add_u32 s57, s57, {ST3:#x}"); A("s_add_u32 s64, s57, 4096")
    A("s_mul_i32 s56, s2, 12288"); A(f"s_add_u32 s56, s56, {X3:#x}")
    A("s_lshr_b32 s61, s4, 1")
    A("v_bfe_u32 v27, v1, 2, 2")
    A(f"v_mul_u32_u24 v4, {KP}, v27"); A("v_cmp_eq_u32 vcc, 3, v27"); A("v_cndmask_b32 v27, 0, 8, vcc"); A("v_add_u32 v4, v4, v27")
    A("v_lshl_add_u32 v4, v26, 3, v4")
    A("v_lshrrev_b32 v28, 5, v1"); A("v_lshlrev_b32 v28, 5, v28")
    A("v_and_b32 v29, 16, v1")
    A("v_add_u32 v4, v4, v28"); A("v_sub_u32 v4, v4, v29")
    A(f"s_mul_i32 s62, s61, {KBS}"); A("s_lshl_b32 s63, s60, 8"); A("s_add_u32 s62, s62, s63"); A(f"s_add_u32 s62, s62, {KB0+32-8}")
    A("v_add_u32 v4, s62, v4")
    A("v_and_b32 v5, 15, v1"); A("v_lshlrev_b32 v5, 5, v5"); A("v_sub_u32 v5, v5, v28"); A("v_add_u32 v5, v5, v29")
    A(f"s_mul_i32 s62, s61, {ULS}"); A(f"s_add_u32 s62, s62, {UL0-192}"); A("s_sub_u32 s62, s62, s63")
    A("v_add_u32 v5, s62, v5")
    A(f"s_lshl_b32 s62, s4, 13"); A(f"s_add_u32 s62, s62, {YL0}"); A("v_lshl_add_u32 v6, v1, 4, s62")
    A("v_mul_u32_u24 v23, 80, v1"); A("v_add_u32 v23, s62, v23")
    A("v_mul_u32_u24 v22, 80, v22"); A("v_lshl_add_u32 v22, v26, 4, v22"); A("v_add_u32 v22, s62, v22")
    A(f"v_mov_b32 v7, {CB:#x}"); A("v_lshl_add_u32 v7, v0, 4, v7")
    A("s_mov_b32 s59, 0xffff0000")
    A("s_mov_b32 s69, 0")
    stamp(A, 8)
    poll(A, "L_pollx", [f"buffer_load_dwordx4 {v(24+4*k,4)}, v2, s[40:43], s56 offen offset:{128*k} sc1" for k in range(3)], [27, 31, 35])
    stamp(A, 9)
    XS = [24, 25, 26, 28, 29, 30, 32, 33]; SS = [36, 37, 38, 40, 41, 42, 44, 45]
    poll(A, "L_polls", [f"buffer_load_dwordx4 {v(64+4*n,4)}, v3, s[40:43], s{57 if n < 2 else 64} offen offset:{2048*(n%2)} sc1" for n in range(4)]
         + [x for e in range(8) for x in (f"v_lshlrev_b32 v{48+e}, 16, v{XS[e]}", f"v_and_b32 v{56+e}, s59, v{XS[e]}")],
         [67, 71, 75, 79], inc=0x100 if STAMP else 1)
    stamp(A, 4)
    for n in range(4): A(f"ds_write_b128 v22, {v(64+4*n,4)} offset:{1280*n}")
    for k in range(3): A(f"ds_read_b128 {v(36+4*k,4)}, v23 offset:{16*k}")
    T = 64
    A("s_waitcnt lgkmcnt(0)")
    for e in range(8):
        A(f"v_and_b32 v{T+16+e}, s59, v{SS[e]}")
        A(f"v_lshlrev_b32 v{T+24+e}, 16, v{SS[e]}")
        A(f"v_rcp_f32 v{T+16+e}, v{T+16+e}")
    for e in range(0, 8, 2):
        A(f"v_pk_add_f32 {v(T+e,2)}, {v(48+e,2)}, {v(T+24+e,2)} neg_lo:[0,1] neg_hi:[0,1]")
        A(f"v_pk_add_f32 {v(T+8+e,2)}, {v(56+e,2)}, {v(T+24+e,2)} neg_lo:[0,1] neg_hi:[0,1]")
    for e in range(8): A(f"v_cvt_pk_bf16_f32 v{8+e}, v{T+e}, v{T+8+e}")
    for e in range(8):
        A(f"v_lshlrev_b32 v{T+e}, 16, v{8+e}"); A(f"v_and_b32 v{T+8+e}, s59, v{8+e}")
    for e in range(0, 8, 2):
        A(f"v_pk_mul_f32 {v(T+e,2)}, {v(T+e,2)}, {v(T+16+e,2)}"); A(f"v_pk_mul_f32 {v(T+8+e,2)}, {v(T+8+e,2)}, {v(T+16+e,2)}")
    for m in range(4): A(f"v_cvt_pk_bf16_f32 v{16+m}, v{T+2*m}, v{T+2*m+1}")
    A(f"ds_write_b128 v7, v[16:19] offset:{UL0-CB}")
    for m in range(4): A(f"v_cvt_pk_bf16_f32 v{20+m}, v{T+8+2*m}, v{T+8+2*m+1}")
    A(f"ds_write_b128 v7, v[20:23] offset:{UL0+ULS-CB}")
    A("s_lshl_b32 s60, s58, 16"); A("s_and_b32 s61, s58, s59")
    A("s_waitcnt lgkmcnt(0)")
    stamp(A, 5)
    A("s_barrier")

def a2_h(A):
    A("s_and_b32 s56, s4, 1")
    A("v_and_b32 v2, 31, v1")
    A(f"v_mul_u32_u24 v4, {PITCH}, v2"); A("v_lshl_add_u32 v4, v6, 4, v4")
    A(f"s_mul_i32 s3, s56, {KSCR}"); A("v_add_u32 v4, s3, v4")
    h_stats(A)
    stamp(A, 3); mark(A, "B1")
    L = Cnt(A)
    FA = 32
    def rd(k):
        L.issue(f"ds_read_b128 {v(FA+8*(k%8),4)}, v4 offset:{k*32}")
        L.issue(f"ds_read_b128 {v(FA+8*(k%8)+4,4)}, v4 offset:{QROW*PITCH + k*32}", k)
    for k in range(7): rd(k)
    A("s_bitcmp1_b32 s4, 1")
    A(f"s_cselect_b32 s57, {3*KP+32+8+8}, {32}"); A(f"s_mov_b32 s58, {2*KP+32}"); A(f"s_cselect_b32 s58, {KP+32}, s58")
    A(f"s_mul_i32 s3, s56, {KBS}"); A(f"s_add_u32 s3, s3, {KB0}"); A("s_add_u32 s57, s57, s3"); A("s_add_u32 s58, s58, s3")
    A("v_add_u32 v5, s57, v7"); A("v_add_u32 v12, s58, v7")
    A("v_and_b32 v3, 1, v1"); A("v_cmp_eq_u32 vcc, 1, v3")
    for k in range(16):
        L.need(k)
        A(f"v_mfma_f32_32x32x16_bf16 {v(16,16)}, {v(FA+8*(k%8),4)}, {v(FA+8*(k%8)+4,4)}, {'0' if k == 0 else v(16,16)}")
        if k + 7 < 16: rd(k + 7)
    stamp(A, 4)
    EL = [[16 + o for o in range(9)], [25, 25, 25, 26, 26, 26, 27, 27, 27], [28] * 4 + [8] + [29] * 4, [30] * 4 + [9] + [31] * 4]
    def expand(par):
        A("v_cndmask_b32 v8, v28, v29, vcc"); A("v_cndmask_b32 v9, v30, v31, vcc")
        if par: A("v_cvt_pk_bf16_f32 v48, 0, v16")
        else: A("v_mov_b32 v48, 0")
        for st in range(4):
            e = EL[st]; d = 32 + 4 * st; c = 48 + 4 * st
            for k in (3, 0, 1, 2): A(f"v_cvt_pk_bf16_f32 v{d+k}, v{e[2*k+par]}, v{e[2*k+1+par]}")
            A(f"ds_write_b128 v5, {v(d,4)} offset:{st*1024}")
            if st: A(f"v_mov_b32_dpp v{c}, v{d-1} wave_ror:1 {DPP}")
            for k in range(3): A(f"v_mov_b32 v{c+1+k}, v{d+k}")
            A(f"v_mov_b32_dpp v{c}, v{d+3} wave_shr:1 {DPP}")
            A(f"ds_write_b128 v12, {v(c,4)} offset:{st*1024}")
    A("s_bitcmp1_b32 s4, 1"); A("s_cbranch_scc1 L_exp_odd")
    expand(0)
    A("s_branch L_exp_j")
    A("L_exp_odd:")
    A("s_nop 7"); A("s_nop 3")
    expand(1)
    A("s_mov_b64 exec, 1")
    A("v_subrev_u32 v13, 4, v5")
    A("ds_write_b32 v13, v48")
    A("L_exp_j:")
    A("s_mov_b64 exec, -1")

def conv_c(A):
    VK, VU, VY = 4, 5, 6
    FR, ACC = 64, 192
    def uf(r, b): return FR + (r & 1) * 64 + b * 4
    def kf(r, a_): return FR + (r & 1) * 64 + 32 + a_ * 4
    L = Cnt(A)
    loads = []
    for r in range(4):
        for q in range(8):
            loads.append((r, f"ds_read_b128 {v(uf(r,q),4)}, v{VU} offset:{512*q + 64*(3-r)}", ("u", r, q)))
            loads.append((r, f"ds_read_b64_tr_b16 {v(kf(r,q),2)}, v{VK} offset:{512*q + 64*r + 8}", None))
            loads.append((r, f"ds_read_b64_tr_b16 {v(kf(r,q)+2,2)}, v{VK} offset:{512*q + 64*r}", ("k", r, q)))
    for _ in range(12): L.issue(*loads.pop(0)[1:])
    low = []
    for m in range(4):
        low += [f"v_lshlrev_b32 v{8+2*m}, 16, v{16+m}", f"v_and_b32 v{9+2*m}, s59, v{16+m}", f"v_lshlrev_b32 v{40+2*m}, 16, v{20+m}", f"v_and_b32 v{41+2*m}, s59, v{20+m}"]
    for e in range(8): low += [f"v_mul_f32 v{8+e}, s60, v{8+e}", f"v_mul_f32 v{40+e}, s61, v{40+e}"]
    for e in range(8): low.append(f"v_cvt_pk_bf16_f32 v{16+e}, v{8+e}, v{40+e}")
    for e in range(8): low += [f"v_lshlrev_b32 v{8+e}, 16, v{16+e}", f"v_and_b32 v{40+e}, s59, v{16+e}"]
    low += ["v_lshrrev_b32 v2, 3, v0", "v_lshlrev_b32 v2, 8, v2", "v_and_b32 v3, 7, v0", "v_lshl_add_u32 v2, v3, 4, v2",
            "v_lshrrev_b32 v3, 5, v0", "v_lshlrev_b32 v3, 10, v3", "v_bfe_u32 v24, v0, 1, 4", "v_lshl_add_u32 v3, v24, 4, v3",
            "v_and_b32 v24, 1, v0", "v_lshl_add_u32 v3, v24, 9, v3", f"v_add_u32 v3, {YL0:#x}, v3"]
    started = set(); wr = []; slot = 0
    for r in range(4):
        mf = [(q, a_) for q in range(8) for a_ in range(q + 1)]
        if r < 3: mf.sort(key=lambda t: max(t[1], t[0] - t[1]))
        for q, a_ in mf:
            while ("u", r, q - a_) not in L.idx or ("k", r, a_) not in L.idx: L.issue(*loads.pop(0)[1:])
            L.need(("u", r, q - a_), ("k", r, a_))
            acc = ACC + 4 * q
            A(f"v_mfma_f32_16x16x32_bf16 {v(acc,4)}, {v(kf(r,a_),4)}, {v(uf(r,q-a_),4)}, {v(acc,4) if q in started else '0'}")
            started.add(q); slot += 1
            if r == 3 and a_ == q: wr.append((slot + 5, q))
            if loads and loads[0][0] <= r + 1:
                L.issue(*loads.pop(0)[1:])
                if r == 0 and loads[0][0] == 0: L.issue(*loads.pop(0)[1:])
            elif wr and wr[0][0] <= slot:
                q2 = wr.pop(0)[1]; L.issue(f"ds_write_b128 v{VY}, {v(ACC+4*q2,4)} offset:{1024*q2}")
            else:
                for _ in range(2 if r == 3 else 1):
                    if low: A(low.pop(0))
    for x in low: A(x)
    for _, q2 in wr: L.issue(f"ds_write_b128 v{VY}, {v(ACC+4*q2,4)} offset:{1024*q2}")
    L.drain()
    stamp(A, 6)
    A("s_barrier")
    Y = 64
    for w in range(4):
        for pl in range(2): A(f"ds_read_b128 {v(Y+8*w+4*pl,4)}, v3 offset:{w*YLS + pl*256}")
    A("s_lshl_b32 s56, s2, 13"); A(f"s_add_u32 s56, s56, {H2:#x}")
    A("s_waitcnt lgkmcnt(4)")
    for e in range(0, 8, 2): A(f"v_pk_add_f32 {v(Y+e,2)}, {v(Y+e,2)}, {v(Y+8+e,2)}")
    A("s_waitcnt lgkmcnt(0)")
    A("s_barrier")
    for e in range(0, 8, 2): A(f"v_pk_add_f32 {v(Y+16+e,2)}, {v(Y+16+e,2)}, {v(Y+24+e,2)}")
    for h in range(2):
        es = range(4 * h, 4 * h + 4)
        for a0, a1 in ((8, 40), (48, 56)):
            for e in es: A(f"v_cvt_pk_bf16_f32 v{16+e}, v{Y+e}, v{Y+16+e}")
            for e in es:
                A(f"v_lshlrev_b32 v{Y+e}, 16, v{16+e}"); A(f"v_and_b32 v{Y+16+e}, s59, v{16+e}")
            for e in es[::2]:
                A(f"v_pk_add_f32 {v(Y+e,2)}, {v(Y+e,2)}, {v(a0+e,2)}"); A(f"v_pk_add_f32 {v(Y+16+e,2)}, {v(Y+16+e,2)}, {v(a1+e,2)}")
        for e in es: A(f"v_cvt_pk_bf16_f32 v{16+e}, v{Y+e}, v{Y+16+e}")
        for e in es: A(f"v_min_u32 v{16+e}, -2, v{16+e}")
        A(f"buffer_store_dwordx4 {v(16+4*h,4)}, v2, s[40:43], s56 offen offset:{128*h} sc1")
    stamp(A, 7)

def cs_load(A):
    A("s_min_u32 s59, s2, 223")
    A("s_cmp_ge_u32 s59, 112"); A("s_cselect_b32 s60, 112, 0"); A("s_cselect_b32 s48, s30, s28"); A("s_cselect_b32 s49, s31, s29")
    A("s_cselect_b32 s62, 7168, 0")
    A("s_sub_u32 s59, s59, s60")
    A("s_and_b32 s49, s49, 0xffff"); A(f"s_mov_b32 s50, {512*3584:#x}"); A("s_mov_b32 s51, 0x20000")
    A("s_and_b32 s60, s59, 3"); A("s_lshr_b32 s59, s59, 2")
    A(f"s_mul_i32 s61, s60, {128*3584}"); A("s_lshl_b32 s3, s59, 7"); A("s_add_u32 s61, s61, s3")
    A("s_mul_i32 s60, s60, 14336"); A("s_add_u32 s62, s62, s60"); A("s_lshl_b32 s3, s59, 8"); A("s_add_u32 s62, s62, s3")
    A(f"s_add_u32 s62, s62, {CS:#x}")
    A("v_lshrrev_b32 v126, 3, v1"); A("v_mul_u32_u24 v126, 3584, v126"); A("v_and_b32 v127, 7, v1"); A("v_lshl_add_u32 v126, v127, 4, v126")
    for n in range(16):
        A(f"buffer_load_dwordx4 {v(128+4*n,4)}, v126, s[48:51], s61 offen")
        if n < 15: A(f"s_add_u32 s61, s61, {8*3584}")

def cs_reduce(A):
    A("s_mov_b32 s56, 0xffff0000")
    for n in range(16):
        A(f"s_waitcnt vmcnt({15-n+7})")
        for m in range(4):
            if n == 0:
                A(f"v_lshlrev_b32 v{8+2*m}, 16, v{128+m}"); A(f"v_and_b32 v{9+2*m}, s56, v{128+m}")
            else:
                A(f"v_lshlrev_b32 v{16+m}, 16, v{128+4*n+m}"); A(f"v_and_b32 v{128+4*n+m}, s56, v{128+4*n+m}")
        if n:
            for m in range(4):
                A(f"v_add_f32 v{8+2*m}, v{8+2*m}, v{16+m}"); A(f"v_add_f32 v{9+2*m}, v{9+2*m}, v{128+4*n+m}")
    for r in range(8, 16): A(f"v_add_f32_dpp v{r}, v{r}, v{r} row_ror:8 {DPP}")
    for sw in ("v_permlane16_swap_b32", "v_permlane32_swap_b32"):
        for r in range(8, 16): A(f"v_mov_b32 v{r+8}, v{r}")
        for r in range(8, 16): A(f"{sw} v{r}, v{r+8}")
        for r in range(8, 16): A(f"v_add_f32 v{r}, v{r}, v{r+8}")
    A("v_and_b32 v2, 8, v1"); A("v_cmp_ne_u32 vcc, 0, v2")
    A("v_and_b32 v3, 7, v1"); A("v_lshlrev_b32 v3, 5, v3"); A("v_lshl_add_u32 v3, v2, 1, v3")
    for m in range(4): A(f"v_cndmask_b32 v{8+m}, v{8+m}, v{12+m}, vcc")
    A("s_cmp_ge_u32 s2, 224"); A("s_cbranch_scc1 L_cs_skip")
    A("s_mov_b64 exec, 0xffff")
    A("buffer_store_dwordx4 v[8:11], v3, s[40:43], s62 offen sc1")
    A("s_mov_b64 exec, -1")
    A("L_cs_skip:")


TOK, W1B0, MISC = 98304, 131072, 159744
CA, MB, MF = MISC, MISC + 1024, MISC + 2048
STG = TOK + 4096
RES, RSQ = 114688, 122880
def w1b_addr(ks):
    if ks < 7: return W1B0 + 4096 * ks
    if ks < 31: return 24576 * ((ks - 7) // 6) + 4096 * ((ks - 7) % 6)
    return TOK
def gemm_ids(A):
    A("s_and_b32 s65, s2, 3"); A("s_lshl_b32 s65, s65, 2"); A("s_bfe_u32 s3, s2, 0x20003"); A("s_add_u32 s65, s65, s3")
    A("s_and_b32 s66, s2, 4"); A("s_lshl_b32 s66, s66, 1"); A("s_lshr_b32 s3, s2, 5"); A("s_add_u32 s66, s66, s3")

def h_pre_b2(A):
    gemm_ids(A)
    A("s_cmp_eq_u32 s4, 7"); A("s_cbranch_scc1 L_hj_cs")
    A("s_cmp_eq_u32 s4, 5"); A("s_cbranch_scc1 L_hj_pf")
    A("s_cmp_eq_u32 s4, 6"); A("s_cbranch_scc0 L_hj_done")
    srd(A, 52, 32, 1792 * 1024)
    A("s_mul_i32 s56, s2, 7168"); A("s_add_u32 s57, s56, 4096")
    for n in range(7): A(f"buffer_load_dwordx4 {v(128+4*n,4)}, v7, s[52:55], s{56+n//4} offen offset:{1024*(n%4)}")
    A("s_branch L_hj_done")
    A("L_hj_pf:")
    for r in range(8, 12): A(f"v_mov_b32 v{r}, -1")
    A("s_lshl_b32 s56, s2, 13"); A(f"s_add_u32 s56, s56, {H2:#x}"); A("s_add_u32 s57, s56, 4096")
    for n in range(8): A(f"buffer_store_dwordx4 v[8:11], v7, s[40:43], s{56+n//4} offen offset:{1024*(n%4)} sc1")
    for r in range(12, 16): A(f"v_mov_b32 v{r}, s5")
    A("s_lshl_b32 s56, s2, 7"); A(f"s_add_u32 s56, s56, {PF:#x}")
    A("s_waitcnt vmcnt(0)")
    A("s_mov_b64 exec, 0xff")
    A("buffer_store_dwordx4 v[12:15], v7, s[40:43], s56 offen sc1")
    A("s_mov_b64 exec, -1")
    A("s_branch L_hj_done")
    A("L_hj_cs:")
    cs_load(A)
    A("L_hj_done:")

def w1a_dma(A, V, c):
    for g in range(2):
        A(f"s_add_u32 s3, s60, {(128*c + 32*g) * 3584}")
        for n in range(3):
            A(f"s_add_u32 m0, s61, {24576*c + 3072*g + 1024*n}")
            V.issue(f"buffer_load_dwordx4 v{10+n}, s[48:51], s3 offen lds")
def w1b_dma(A, V, ks):
    A(f"s_add_u32 s3, s62, {16*ks*3584}")
    A(f"s_add_u32 m0, s63, {w1b_addr(ks)}")
    V.issue("buffer_load_dwordx4 v13, s[48:51], s3 offen lds", ("w1b", ks))

def h_conv_time(A):
    for r in range(4, 8): pass
    for r in range(20, 24): A(f"v_mov_b32 v{r}, -1")
    A("s_lshl_b32 s56, s2, 2"); A("s_add_u32 s56, s56, s4"); A("s_sub_u32 s56, s56, 4"); A("s_mul_i32 s56, s56, 7168")
    A(f"s_add_u32 s56, s56, {HH:#x}"); A("s_add_u32 s57, s56, 4096")
    for n in range(7): A(f"buffer_store_dwordx4 v[20:23], v7, s[40:43], s{56+n//4} offen offset:{1024*(n%4)} sc1")
    A("s_cmp_eq_u32 s4, 7"); A("s_cbranch_scc1 L_hc_cs")
    A("s_cmp_eq_u32 s4, 6"); A("s_cbranch_scc0 L_hc_done")
    A("v_lshlrev_b32 v2, 7, v1"); A(f"s_mov_b32 s56, {PF:#x}"); A(f"s_mov_b32 s57, {PF+8192:#x}"); A(f"s_mov_b32 s58, {PF+16384:#x}"); A(f"s_mov_b32 s59, {PF+24576:#x}")
    A("s_mov_b32 s69, 0")
    A("s_waitcnt vmcnt(0)")
    poll(A, "L_pollpf", [f"buffer_load_dword v{24+n}, v2, s[40:43], s{56+n} offen sc1" for n in range(4)], [24, 25, 26, 27])
    A("s_branch L_hc_done")
    A("L_hc_cs:")
    cs_reduce(A)
    A("L_hc_done:")
    stamp(A, 9)
    A("s_bitcmp1_b32 s4, 1")
    A("s_cselect_b32 s48, s30, s28"); A("s_cselect_b32 s49, s31, s29"); A("s_cselect_b32 s56, 4, 0"); A("s_cselect_b32 s57, 1, 0")
    A("s_and_b32 s49, s49, 0xffff"); A(f"s_mov_b32 s50, {512*3584:#x}"); A("s_mov_b32 s51, 0x20000")
    srd(A, 52, 32, 1792 * 1024)
    A("s_and_b32 s58, s4, 1")
    for n in range(3):
        A(f"v_add_u32 v2, {64*n}, v1"); A("v_mul_u32_u24 v3, 171, v2"); A("v_lshrrev_b32 v3, 10, v3")
        A("v_mul_u32_u24 v4, 6, v3"); A("v_sub_u32 v4, v2, v4")
        A("v_xor_b32 v3, s56, v3"); A("v_mul_u32_u24 v3, 3584, v3"); A(f"v_lshl_add_u32 v{10+n}, v4, 4, v3")
    A(f"s_mul_i32 s60, s58, {64*3584}"); A("s_mul_i32 s3, s66, 96"); A("s_add_u32 s60, s60, s3"); A("s_add_u32 s60, s60, 2048")
    A("s_mul_i32 s61, s57, 12288"); A("s_mul_i32 s3, s58, 6144"); A("s_add_u32 s61, s61, s3")
    A("v_lshrrev_b32 v2, 3, v1"); A("v_and_b32 v3, 7, v1"); A("v_and_b32 v4, 2, v2"); A("v_xor_b32 v3, v3, v4"); A("v_xor_b32 v3, s56, v3")
    A("v_mul_u32_u24 v13, 3584, v2"); A("v_lshl_add_u32 v13, v3, 4, v13")
    A(f"s_mul_i32 s62, s58, {8*3584}"); A("s_lshl_b32 s3, s66, 7"); A("s_add_u32 s62, s62, s3")
    A("s_sub_u32 s63, s4, 4"); A("s_lshl_b32 s63, s63, 10")
    V = Cnt(A, "vmcnt", 63)
    for c in range(3): w1a_dma(A, V, c)
    stamp(A, 10)
    A("s_waitcnt vmcnt(18)")
    stamp(A, 6)
    A("s_barrier")
    return V

def checked(A, V, label, regs, reload, keys):
    V.need(*keys)
    A(f"{label}:")
    A(f"v_max3_u32 v2, v{regs[0]}, v{regs[1]}, v{regs[2]}"); A(f"v_max3_u32 v3, v{regs[3]}, v{regs[4]}, v{regs[5]}")
    rest = regs[6:]; t = 0
    while rest:
        A(f"v_max3_u32 v{2+t}, v{2+t}, v{rest[0]}, v{rest[1]}"); rest = rest[2:]; t ^= 1
    A("v_max_u32 v2, v2, v3")
    A("v_cmp_eq_u32 vcc, -1, v2")
    A(f"s_cbranch_vccnz {label}_retry")
    A(f"{label}_ok:")
    STUBS.append((label, reload))
STUBS = []
def emit_stubs(A):
    for label, reload in STUBS:
        A(f"{label}_retry:")
        A("s_add_u32 s69, s69, 1"); A(f"s_cmp_gt_u32 s69, {SPIN_MAX}"); A(f"s_cbranch_scc1 {label}_ok")
        for l in reload: A(l)
        A("s_waitcnt vmcnt(0)")
        A(f"s_branch {label}")

def h_gemm(A, V):
    L = Cnt(A)
    w1a_dma(A, V, 3)
    A("v_lshrrev_b32 v2, 3, v1"); A("v_and_b32 v3, 7, v1")
    A("v_lshlrev_b32 v14, 13, v2"); A("v_lshl_add_u32 v14, v3, 4, v14")
    A("s_sub_u32 s56, s4, 4")
    A("s_lshl_b32 s64, s65, 2"); A("s_add_u32 s64, s64, s56"); A("s_lshl_b32 s64, s64, 7"); A(f"s_add_u32 s64, s64, {H2:#x}")
    A("v_lshrrev_b32 v15, 5, v1"); A("v_lshlrev_b32 v15, 9, v15"); A("v_lshl_add_u32 v15, v3, 4, v15")
    A("v_and_b32 v2, 3, v2"); A("v_lshl_add_u32 v15, v2, 2, v15")
    A("s_lshl_b32 s3, s56, 12"); A(f"s_add_u32 s3, s3, {TOK}"); A("v_add_u32 v15, s3, v15")
    A("s_mov_b32 s59, 0xffff0000"); A("s_mov_b32 s69, 0")
    A("s_barrier")
    for ks in range(7): w1b_dma(A, V, ks)
    A("s_barrier")
    stamp(A, 1, "g"); mark(A, "B5")
    def tok(n): return [f"s_add_u32 s3, s64, {n*65536}", f"buffer_load_dwordx4 {v(128+4*n,4)}, v14, s[40:43], s3 offen sc1"]
    for n in range(32):
        t = tok(n); A(t[0]); V.issue(t[1], ("t", n))
    sums = []
    for n in range(32):
        for e in range(4):
            r = 128 + 4 * n + e
            if n == 0: sums.append((n, [f"v_lshlrev_b32 v{16+e}, 16, v{r}", f"v_and_b32 v{20+e}, s59, v{r}"]))
            else: sums.append((n, [f"v_lshlrev_b32 v{24+e}, 16, v{r}", f"v_and_b32 v{28+e}, s59, v{r}"]))
        if n:
            for e in range(4): sums.append((n, [f"v_add_f32 v{16+e}, v{16+e}, v{24+e}", f"v_add_f32 v{20+e}, v{20+e}, v{28+e}"]))
    def do_sums(maxn, budget):
        while sums and sums[0][0] <= maxn and budget > 0:
            for x in sums.pop(0)[1]: A(x)
            budget -= 2
    for c in range(8):
        checked(A, V, f"L_tk{c}", list(range(128 + 16 * c, 144 + 16 * c)), [x for n in range(4 * c, 4 * c + 4) for x in tok(n)], [("t", 4 * c + 3)])
        for n in range(4):
            for e in range(4): L.issue(f"ds_write_b32 v15, v{128+16*c+4*n+e} offset:{(c&1)*16384 + n*1024 + e*128}")
        L.drain()
        if c == 0: stamp(A, 2, "g")
        A("s_barrier")
        if c in (3, 5, 7):
            g0 = 7 + 3 * (c - 3)
            for ks in range(g0, g0 + 6): w1b_dma(A, V, ks)
        do_sums(4 * c + 3, 32 if c < 7 else 48)
    A("v_and_b32 v2, 3, v1"); A("v_bfe_u32 v3, v1, 2, 1"); A("v_lshl_add_u32 v2, v3, 3, v2"); A("v_bfe_u32 v3, v1, 3, 1"); A("v_lshl_add_u32 v2, v3, 2, v2")
    A("v_lshlrev_b32 v2, 2, v2"); A("v_bfe_u32 v3, v1, 4, 1"); A("v_mul_u32_u24 v3, 7168, v3"); A("v_add_u32 v2, v2, v3")
    A("v_lshrrev_b32 v3, 5, v1"); A("v_mul_u32_u24 v3, 28672, v3"); A("v_add_u32 v4, v2, v3"); A("v_add_u32 v5, 14336, v4")
    A("s_mul_i32 s57, s66, 192"); A("s_lshl_b32 s3, s56, 6"); A("s_add_u32 s57, s57, s3"); A("s_add_u32 s57, s57, 4096")
    A("s_lshl_b32 s58, s66, 8")
    A("s_cmp_eq_u32 s56, 3"); A("s_cselect_b32 s57, s58, s57")
    A("s_add_u32 s58, s58, s3"); A("s_add_u32 s58, s58, 64")
    A(f"s_add_u32 s57, s57, {CS:#x}"); A(f"s_add_u32 s58, s58, {CS:#x}")
    for t in range(2):
        V.issue(f"buffer_load_dword v{32+2*t}, v4, s[40:43], s{57+t} offen sc1"); V.issue(f"buffer_load_dword v{33+2*t}, v5, s[40:43], s{57+t} offen sc1", ("cs", t))
    V.need(("w1b", 12))
    stamp(A, 3, "g")
    A("s_barrier")
    for ks in range(25, 32): w1b_dma(A, V, ks)
    A("v_lshrrev_b32 v2, 3, v1"); A("v_and_b32 v3, 7, v1"); A("v_and_b32 v6, 2, v2"); A("v_lshlrev_b32 v6, 1, v6"); A("v_xor_b32 v3, v3, v6")
    A("v_lshlrev_b32 v10, 10, v2"); A("v_lshl_add_u32 v10, v3, 4, v10")
    A("s_lshr_b32 s60, s66, 1"); A("s_lshl_b32 s60, s60, 7")
    A(f"s_mul_i32 s61, s56, {12*16384}"); A(f"s_add_u32 s61, s61, {64*16384}"); A("s_add_u32 s61, s61, s60")
    A("s_lshl_b32 s3, s56, 18"); A("s_add_u32 s60, s60, s3")
    A("s_mul_i32 s62, s56, 7168"); A(f"s_add_u32 s62, s62, {STG}"); A("s_mul_i32 s63, s56, 28672")
    order = [("a", i) for i in range(12)] + [("b", 4 * q + i) for q in range(4) for i in range(2)] + [("b", 4 * q + 2 + i) for q in range(4) for i in range(2)]
    def w2_dma(k):
        typ, i = order[k]
        for h in range(2):
            A(f"s_add_u32 s3, s{61 if typ == 'a' else 60}, {i*16384 + h*8192}")
            if k < 14: A(f"s_add_u32 m0, s62, {(k%3)*2048 + h*1024}")
            else: A(f"s_add_u32 m0, s63, {(k-14)*2048 + h*1024}")
            V.issue("buffer_load_dwordx4 v10, s[52:55], s3 offen lds", ("w2", k))
    for k in range(3): w2_dma(k)
    do_sums(31, 10000)
    for e in range(4): A(f"v_add_f32 v{16+e}, v{16+e}, v{20+e}")
    for e in range(4): A(f"v_add_f32_dpp v{16+e}, v{16+e}, v{16+e} row_ror:8 {DPP}")
    for sw in ("v_permlane16_swap_b32", "v_permlane32_swap_b32"):
        for e in range(4): A(f"v_mov_b32 v{20+e}, v{16+e}")
        for e in range(4): A(f"{sw} v{16+e}, v{20+e}")
        for e in range(4): A(f"v_add_f32 v{16+e}, v{16+e}, v{20+e}")
    A("v_bfe_u32 v2, v1, 3, 2")
    for e in range(1, 4):
        A(f"v_cmp_eq_u32 vcc, {e}, v2"); A(f"v_cndmask_b32 v16, v16, v{16+e}, vcc")
    A(f"v_mul_f32 v16, {fbits(1/512):#x}, v16")
    A("v_cvt_pk_bf16_f32 v17, -v16, -v16"); A("v_and_b32 v18, s59, v17"); A("v_add_f32 v18, v18, v16")
    A("v_cvt_pk_bf16_f32 v18, -v18, -v18")
    A("v_cmp_gt_u32 vcc, 32, v1"); A("v_cndmask_b32 v17, v18, v17, vcc")
    A("s_lshl_b32 s3, s56, 8"); A(f"s_add_u32 s3, s3, {MB}"); A("v_lshl_add_u32 v2, v1, 2, s3")
    L.issue("ds_write_b32 v2, v17"); L.issue(f"ds_write_b32 v2, v16 offset:{MF-MB}")
    V.need(("cs", 1))
    for t in range(2): A(f"v_add_f32 v{32+2*t}, v{32+2*t}, v{33+2*t}")
    for t in range(2): A(f"v_mov_b32 v{33+2*t}, v{32+2*t}")
    for t in range(2): A(f"v_permlane32_swap_b32 v{32+2*t}, v{33+2*t}")
    for t in range(2): A(f"v_add_f32 v{32+2*t}, v{32+2*t}, v{33+2*t}")
    for t in range(2): A(f"v_cvt_pk_bf16_f32 v{33+2*t}, v{32+2*t}, v{32+2*t}")
    for t in range(2): A(f"v_and_b32 v{36+t}, s59, v{33+2*t}")
    for t in range(2): A(f"v_sub_f32 v{32+2*t}, v{32+2*t}, v{36+t}")
    for t in range(2): A(f"v_cvt_pk_bf16_f32 v{32+2*t}, v{36+t}, v{32+2*t}")
    A("v_and_b32 v2, 31, v1"); A("s_lshl_b32 s3, s56, 7"); A(f"s_add_u32 s3, s3, {CA}"); A("v_lshl_add_u32 v2, v2, 2, s3")
    L.issue("ds_write_b32 v2, v32"); L.issue("ds_write_b32 v2, v34 offset:512")
    L.drain()
    V.need(("w1b", 18))
    stamp(A, 4, "g")
    A("s_barrier")
    A("v_bfe_u32 v2, v1, 2, 2"); A("v_lshrrev_b32 v3, 5, v1"); A("v_lshl_add_u32 v3, v3, 3, v2"); A("v_lshlrev_b32 v11, 7, v3")
    A("v_lshrrev_b32 v2, 1, v2"); A("s_lshr_b32 s3, s56, 1"); A("v_xor_b32 v2, s3, v2"); A("v_lshl_add_u32 v11, v2, 6, v11")
    A("v_bfe_u32 v2, v1, 4, 1"); A("v_lshl_add_u32 v11, v2, 4, v11")
    A("v_bfe_u32 v2, v1, 1, 1"); A("v_lshl_add_u32 v11, v2, 3, v11")
    A("v_and_b32 v2, 1, v1"); A("v_lshl_add_u32 v11, v2, 5, v11")
    A("v_xor_b32 v12, 64, v11")
    A("v_add_u32 v13, s63, v11"); A("v_add_u32 v14, s63, v12"); A("v_add_u32 v11, s62, v11"); A("v_add_u32 v12, s62, v12")
    def w2_read(k, dst):
        base = (k % 3) * 2048 if k < 14 else (k - 14) * 2048
        for a_ in range(2):
            for h in range(2): L.issue(f"ds_read_b64_tr_b16 {v(dst+4*a_+2*h,2)}, v{(11 if k < 14 else 13)+a_} offset:{base + 512*h}", ("w", k))
    def park(k):
        V.need(("w2", k)); w2_read(k, 128 + 8 * k); L.drain()
        if k + 3 < 14: w2_dma(k + 3)
    for k in range(3): park(k)
    V.need(("w1b", 24))
    A("s_barrier")
    V.need(("w1b", 31))
    A("s_barrier")
    A("s_lshl_b32 s57, s65, 2"); A("s_and_b32 s3, s66, 1"); A("s_lshl_b32 s3, s3, 1"); A("s_add_u32 s57, s57, s3")
    A("s_and_b32 s3, s56, 1"); A("s_add_u32 s58, s57, s3"); A("s_xor_b32 s3, s3, 1"); A("s_add_u32 s57, s57, s3")
    A("s_mul_i32 s58, s58, 114688"); A("s_mul_i32 s57, s57, 114688")
    A("v_add_u32 v8, s58, v7"); A("v_add_u32 v9, s57, v7")
    A("s_mul_i32 s57, s56, 12288"); A(f"s_add_u32 s57, s57, {HH + 65536:#x}"); A("s_lshl_b32 s58, s56, 14"); A(f"s_add_u32 s58, s58, {HH:#x}")
    for k in range(3, 14): park(k)
    stamp(A, 5, "g")
    free = [16, 24, 32, 40, 48, 56]; hslot = {}
    def hh(k):
        typ, i = order[k]
        return [f"s_add_u32 s3, s{57 if typ == 'a' else 58}, {i*1024}"] + [f"buffer_load_dwordx4 {v(hslot[k]+4*b,4)}, v{8+b}, s[40:43], s3 offen sc1" for b in range(2)]
    nh = [0]
    def hh_fill(limit):
        while free and nh[0] < limit:
            k = nh[0]; hslot[k] = free.pop(0); t = hh(k); A(t[0]); V.issue(t[1]); V.issue(t[2], ("h", k)); nh[0] += 1
    hh_fill(28)
    A("s_barrier")
    stamp(A, 6, "g"); mark(A, "PE")
    nw = [14]
    def w_fill(n):
        for _ in range(n):
            if nw[0] < 28: w2_dma(nw[0]); nw[0] += 1
    w_fill(6)
    ACC = 64
    for g in range(14):
        ks = (2 * g, 2 * g + 1)
        if g == 10: stamp(A, 7, "g")
        regs = [r for k in ks for r in range(hslot[k], hslot[k] + 8)]
        if ks[0] >= 14:
            V.need(("w2", ks[1]))
            for k in ks: w2_read(k, 240 + 8 * (k & 1))
        checked(A, V, f"L_hh{g}", regs, hh(ks[0]) + hh(ks[1]), [("h", ks[1])])
        for k in ks:
            wr = 128 + 8 * k if k < 14 else 240 + 8 * (k & 1)
            if k >= 14: L.need(("w", k))
            for a_ in range(2):
                for b in range(2):
                    acc = ACC + 16 * (2 * a_ + b)
                    A(f"v_mfma_f32_32x32x16_bf16 {v(acc,16)}, {v(wr+4*a_,4)}, {v(hslot[k]+4*b,4)}, {'0' if k == 0 else v(acc,16)}")
            free.append(hslot[k])
            if k < 14: free.append(wr)
        hh_fill(20 if g < 6 else 28); w_fill(2)
    stamp(A, 8, "g")
    A("v_add_u32 v2, s63, v7")
    for sl in (1, 2, 3):
        for q in range(4): A(f"ds_write_b128 v2, {v(ACC+16*sl+4*q,4)} offset:{sl*4096 + q*1024}")
    for sl in (1, 2, 3):
        A(f"s_xor_b32 s3, s56, {sl}"); A("s_mul_i32 s3, s3, 28672"); A(f"v_add_u32 v{2+sl}, s3, v7")
    A("s_lshl_b32 s3, s56, 11"); A(f"s_add_u32 s3, s3, {RES}"); A("v_add_u32 v6, s3, v7")
    A("s_and_b32 s57, s56, 1"); A("s_lshl_b32 s3, s57, 7"); A(f"s_add_u32 s3, s3, {RSQ}"); A("v_and_b32 v8, 31, v1"); A("v_lshl_add_u32 v8, v8, 2, s3")
    A("v_and_b32 v9, 7, v1"); A("v_lshlrev_b32 v9, 13, v9"); A("v_bfe_u32 v10, v1, 3, 2"); A("v_lshl_add_u32 v9, v10, 10, v9")
    A("v_lshrrev_b32 v10, 5, v1"); A("v_lshl_add_u32 v9, v10, 5, v9")
    A("s_lshl_b32 s58, s65, 1"); A("s_and_b32 s3, s66, 1"); A("s_add_u32 s58, s58, s3"); A("s_lshl_b32 s58, s58, 16")
    A("s_lshl_b32 s3, s57, 12"); A("s_add_u32 s58, s58, s3")
    A("s_lshr_b32 s3, s66, 1"); A("s_lshl_b32 s3, s3, 7"); A("s_add_u32 s58, s58, s3")
    A("s_lshr_b32 s3, s56, 1"); A("s_lshl_b32 s3, s3, 6"); A("s_add_u32 s58, s58, s3")
    srd(A, 44, 34, 0x200000)
    A("s_waitcnt lgkmcnt(0)")
    A("s_barrier")
    stamp(A, 9, "g")
    A("ds_read_b32 v12, v8")
    for h in range(2): A(f"ds_read_b128 {v(16+4*h,4)}, v6 offset:{1024*h}")
    for sl in (1, 2, 3):
        for q in range(4): A(f"ds_read_b128 {v(128+16*sl+4*q,4)}, v{2+sl} offset:{sl*4096 + q*1024}")
    A("s_waitcnt lgkmcnt(12)")
    for m in range(8): A(f"v_lshlrev_b32 v{32+2*m}, 16, v{16+m}"); A(f"v_and_b32 v{33+2*m}, s59, v{16+m}")
    for sl in (1, 2, 3):
        A(f"s_waitcnt lgkmcnt({12-4*sl})")
        for r in range(0, 16, 2): A(f"v_pk_add_f32 {v(ACC+r,2)}, {v(ACC+r,2)}, {v(128+16*sl+r,2)}")
    for h in range(2):
        ms = range(4 * h, 4 * h + 4)
        for m in ms: A(f"v_pk_mul_f32 {v(ACC+2*m,2)}, {v(ACC+2*m,2)}, v[12:13] op_sel_hi:[1,0]")
        for m in ms: A(f"v_cvt_pk_bf16_f32 v{16+m}, v{ACC+2*m}, v{ACC+2*m+1}")
        for m in ms: A(f"v_lshlrev_b32 v{ACC+2*m}, 16, v{16+m}"); A(f"v_and_b32 v{ACC+2*m+1}, s59, v{16+m}")
        for m in ms: A(f"v_pk_add_f32 {v(ACC+2*m,2)}, {v(ACC+2*m,2)}, {v(32+2*m,2)}")
        for m in ms: A(f"v_cvt_pk_bf16_f32 v{16+m}, v{ACC+2*m}, v{ACC+2*m+1}")
        A(f"buffer_store_dwordx4 {v(16+4*h,4)}, v9, s[44:47], s58 offen offset:{16*h}")
    stamp(A, 10, "g")

def c_gemm(A):
    gemm_ids(A)
    A("v_lshlrev_b32 v7, 4, v1")
    A("v_bfe_u32 v24, v1, 4, 1")
    A("v_bfe_u32 v25, v1, 2, 2")
    A("v_lshrrev_b32 v26, 5, v1"); A("v_lshl_add_u32 v26, v26, 3, v25")
    A("v_and_b32 v27, 1, v1"); A("v_lshlrev_b32 v27, 4, v27"); A("v_bfe_u32 v28, v1, 1, 1"); A("v_lshl_add_u32 v27, v28, 3, v27")
    A("v_lshl_add_u32 v28, v24, 2, v26"); A("v_xor_b32 v29, 4, v28")
    A("v_mul_u32_u24 v30, 12288, v24"); A("v_add_u32 v30, v30, v27")
    A("v_mad_u32_u24 v8, v28, 64, v30"); A("v_lshl_add_u32 v8, v28, 5, v8")
    A("v_mad_u32_u24 v9, v29, 64, v30"); A("v_lshl_add_u32 v9, v29, 5, v9")
    A("v_add_u32 v10, 49152, v8"); A("v_add_u32 v11, 49152, v9")
    A("s_lshl_b32 s3, s4, 12"); A(f"s_add_u32 s3, s3, {TOK}"); A("v_add_u32 v12, s3, v7")
    A("v_lshlrev_b32 v13, 11, v24"); A("v_lshl_add_u32 v13, v26, 7, v13"); A("v_add_u32 v13, v13, v27")
    A("v_lshrrev_b32 v25, 1, v25"); A("v_lshl_add_u32 v25, v24, 1, v25"); A("v_lshl_add_u32 v13, v25, 5, v13")
    A("v_and_b32 v14, 31, v1"); A("v_lshlrev_b32 v14, 2, v14"); A(f"v_add_u32 v14, {CA:#x}, v14")
    A("s_lshl_b32 s3, s4, 8"); A(f"s_add_u32 s3, s3, {MB}"); A("v_lshl_add_u32 v15, v1, 2, s3")
    A("s_lshl_b32 s56, s65, 2"); A("s_add_u32 s56, s56, s4"); A("s_mul_i32 s56, s56, 114688"); A(f"s_add_u32 s56, s56, {HH:#x}")
    A("s_mul_i32 s57, s66, 3072"); A("s_add_u32 s57, s57, s56"); A("s_add_u32 s57, s57, 65536")
    A("s_lshl_b32 s3, s66, 12"); A("s_add_u32 s56, s56, s3")
    A("s_waitcnt vmcnt(0)")
    for r in (17, 18, 19, 21, 22, 23): A(f"v_mov_b32 v{r}, 0")
    stamp(A, 1, "g")
    A("s_barrier")
    L = Cnt(A)
    WF, ACC, TK = 24, 48, 128
    def rd1(ks, i):
        c = ks // 8; d = WF + (ks & 1) * 12 + 4 * i
        off = 24576 * (c & 1) + 1536 * (ks & 7) + 32 * i
        return [(f"ds_read_b64_tr_b16 {v(d+2*h,2)}, v{8+2*(c>>1)+h} offset:{off}", ("w", 1, ks, i)) for h in range(2)]
    A("s_barrier")
    stamp(A, 2, "g")
    def tokrd(c):
        for n in range(4): L.issue(f"ds_read_b128 {v(TK+16*c+4*n,4)}, v12 offset:{(c&1)*16384 + n*1024}", ("t", 4 * c + n))
    tokrd(0)
    for i in range(3):
        for x in rd1(0, i): L.issue(*x)
    AB = [[2, 3, 4], [5, 6, 0]]
    def set_ab(t0):
        out = []
        for a_ in range(2):
            out.append(f"v_xor_b32 v{AB[a_][0]}, {32*(t0+a_)}, v13" if 32 * (t0 + a_) else f"v_mov_b32 v{AB[a_][0]}, v13")
            out += [f"v_add_u32 v{AB[a_][w]}, {65536*w:#x}, v{AB[a_][0]}" for w in (1, 2)]
        return out
    def rd2(p, ks, a_):
        ad = w1b_addr(ks); d = WF + (ks % 3) * 8 + 4 * a_
        return [(f"ds_read_b64_tr_b16 {v(d+2*h,2)}, v{AB[a_][ad >> 16]} offset:{(ad & 65535) + 512*h}", ("w", p, ks, a_)) for h in range(2)]
    misc = set_ab(0)
    for ks in range(32):
        if ks % 4 == 3 and ks < 31:
            L.need(("t", ks))
            A("s_barrier")
            tokrd(ks // 4 + 1)
        for i in range(3):
            if ks < 31:
                for x in rd1(ks + 1, i): L.issue(*x)
            L.need(("w", 1, ks, i), ("t", ks))
            A(f"v_mfma_f32_32x32x16_bf16 {v(ACC+16*i,16)}, {v(WF+(ks&1)*12+4*i,4)}, {v(TK+4*ks,4)}, {'0' if ks == 0 else v(ACC+16*i,16)}")
            if misc and ks > 4: A(misc.pop(0))
    stamp(A, 3, "g")
    A("s_barrier")
    def epi(tile, acc, sreg, off):
        ins = [("L", f"ds_read_b32 v16, v14 offset:{128*tile}", ("ca", tile)), ("M", acc, tile), ("gap",)]
        for r in range(8): ins.append(("V", f"v_mul_f32 v{acc+r}, v{acc+r}, v{acc+8+r}"))
        for m in range(4): ins.append(("V", f"v_cvt_pk_bf16_f32 v{acc+8+m}, v{acc+2*m}, v{acc+2*m+1}"))
        for m in range(4): ins.append(("V", f"v_min_u32 v{acc+8+m}, -2, v{acc+8+m}"))
        ins.append(("V", f"buffer_store_dwordx4 {v(acc+8,4)}, v7, s[40:43], s{sreg} offen offset:{off} sc1"))
        return ins
    pend = []; gap = [0]
    def fill(n):
        while n > 0 and pend:
            x = pend[0]
            if x[0] == "gap":
                if gap[0] > 0: gap[0] -= 1; return
                pend.pop(0); continue
            pend.pop(0)
            if x[0] == "L": L.issue(x[1], x[2]); return
            if x[0] == "M":
                L.need(("ca", x[2]), ("mb",))
                A(f"v_mfma_f32_32x32x16_bf16 {v(x[1],16)}, v[16:19], v[20:23], {v(x[1],16)}"); gap[0] = 2; return
            A(x[1]); n -= 1
    for p, accs in ((2, (ACC + 48, ACC + 64)), (3, (ACC, ACC + 16))):
        if p == 2:
            for k0 in (0, 1):
                for a_ in range(2):
                    for x in rd2(p, k0, a_): L.issue(*x)
        for ks in range(32):
            if p == 2 and ks in (11, 17, 23):
                A("s_barrier")
                if ks == 11:
                    stamp(A, 4, "g")
                    L.issue("ds_read_b32 v20, v15", ("mb",))
                    for i in range(3): pend.extend(epi(i, ACC + 16 * i, 57, 1024 * i))
            if p == 2 and ks == 30:
                for x in set_ab(2): A(x)
            if p == 3 and ks == 0:
                while pend: fill(100)
                stamp(A, 5, "g")
            if p == 3 and ks == 2:
                for a_ in range(2): pend.extend(epi(3 + a_, ACC + 48 + 16 * a_, 56, 1024 * a_))
            if p == 3 and ks == 31:
                L.drain(); A("s_barrier")
            for a_ in range(2):
                kn = ks + 2
                if kn < 32:
                    nx = [(x[0].replace(v(WF + (kn % 3) * 8 + 4 * a_ + 2 * h, 2), v(WF + ((kn + (p - 2) * 32) % 3) * 8 + 4 * a_ + 2 * h, 2)), x[1]) for h, x in enumerate(rd2(p, kn, a_))]
                elif p == 2:
                    nx = [(x[0].replace(v(WF + ((kn - 32) % 3) * 8 + 4 * a_ + 2 * h, 2), v(WF + (kn % 3) * 8 + 4 * a_ + 2 * h, 2)), x[1]) for h, x in enumerate(rd2(3, kn - 32, a_))]
                else: nx = []
                for x in nx: L.issue(*x)
                L.need(("w", p, ks, a_))
                wr = WF + ((ks + (p - 2) * 32) % 3) * 8 + 4 * a_
                A(f"v_mfma_f32_32x32x16_bf16 {v(accs[a_],16)}, {v(wr,4)}, {v(TK+4*ks,4)}, {'0' if ks == 0 else v(accs[a_],16)}")
                fill(2)
    while pend: fill(100)
    stamp(A, 6, "g")
    e5, e6 = epi(5, ACC, 56, 2048), epi(6, ACC + 16, 56, 3072)
    L.issue(e5[0][1], e5[0][2]); L.issue("ds_read_b32 v24, v14 offset:768", ("ca", 6))
    for r in (25, 26, 27): A(f"v_mov_b32 v{r}, 0")
    L.drain()
    A(f"v_mfma_f32_32x32x16_bf16 {v(ACC,16)}, v[16:19], v[20:23], {v(ACC,16)}")
    A(f"v_mfma_f32_32x32x16_bf16 {v(ACC+16,16)}, v[24:27], v[20:23], {v(ACC+16,16)}")
    for x in e5[3:] + e6[3:]: A(x[1])
    stamp(A, 7, "g")
    A("v_and_b32 v2, 7, v1"); A("v_lshlrev_b32 v2, 4, v2"); A("v_bfe_u32 v3, v1, 3, 2"); A("v_lshl_add_u32 v2, v3, 2, v2")
    A("v_lshrrev_b32 v3, 5, v1"); A("v_lshl_add_u32 v2, v3, 16, v2")
    A("s_lshl_b32 s57, s65, 2"); A("s_and_b32 s58, s66, 1"); A("s_lshl_b32 s3, s58, 1"); A("s_add_u32 s57, s57, s3"); A("s_and_b32 s3, s4, 1"); A("s_add_u32 s57, s57, s3")
    A("s_lshl_b32 s57, s57, 7"); A("s_lshr_b32 s3, s66, 1"); A("s_lshl_b32 s3, s3, 18"); A("s_add_u32 s57, s57, s3")
    A("s_lshr_b32 s60, s4, 1"); A("s_lshl_b32 s3, s60, 17"); A("s_add_u32 s57, s57, s3"); A(f"s_add_u32 s57, s57, {H2:#x}")
    for m in range(8):
        A(f"buffer_load_dword v{32+m}, v2, s[40:43], s57 offen sc1")
        if m < 7: A("s_add_u32 s57, s57, 8192")
    A("s_cmp_lg_u32 s60, s58"); A("s_cbranch_scc1 L_c_nors")
    A(f"ds_read_b32 v8, v15 offset:{MF-MB}")
    for r in range(4): A(f"v_mov_b32 v{24+r}, 0")
    for r in range(0, 128, 2):
        for q in range(2): A(f"v_lshlrev_b32 v{28+2*q}, 16, v{TK+r+q}"); A(f"v_and_b32 v{29+2*q}, s59, v{TK+r+q}")
        for q in range(4): A(f"v_fmac_f32 v{24+q}, v{28+q}, v{28+q}")
    A("v_add_f32 v24, v24, v25"); A("v_add_f32 v26, v26, v27"); A("v_add_f32 v24, v24, v26")
    A("v_mov_b32 v25, v24"); A("v_permlane32_swap_b32 v24, v25"); A("v_add_f32 v24, v24, v25")
    A("s_waitcnt lgkmcnt(0)")
    A(f"v_mul_f32 v24, {fbits(1/512):#x}, v24"); A("v_fma_f32 v24, -v8, v8, v24"); A("v_max_f32 v24, 0, v24")
    A("v_cvt_pk_bf16_f32 v24, v24, v24"); A("v_lshlrev_b32 v24, 16, v24")
    A(f"v_add_f32 v24, {fbits(1e-5):#x}, v24")
    A("v_cvt_pk_bf16_f32 v24, v24, v24"); A("v_lshlrev_b32 v24, 16, v24")
    A("v_sqrt_f32 v24, v24")
    A("v_cvt_pk_bf16_f32 v24, v24, v24"); A("v_lshlrev_b32 v24, 16, v24")
    A("v_rcp_f32 v24, v24"); A("v_mul_f32 v24, v24, v24")
    A("s_and_b32 s3, s4, 1"); A("s_lshl_b32 s3, s3, 7"); A(f"s_add_u32 s3, s3, {RSQ}"); A("v_and_b32 v2, 31, v1"); A("v_lshl_add_u32 v2, v2, 2, s3")
    A("ds_write_b32 v2, v24")
    A("L_c_nors:")
    A("s_lshl_b32 s3, s4, 11"); A(f"s_add_u32 s3, s3, {RES}"); A("v_add_u32 v2, s3, v7")
    A("s_waitcnt vmcnt(0)")
    for h in range(2): A(f"ds_write_b128 v2, {v(32+4*h,4)} offset:{1024*h}")
    A("s_or_b32 s3, s2, s4"); A("s_cmp_lg_u32 s3, 0"); A("s_cbranch_scc1 L_c_noep")
    A("v_mov_b32 v3, 0"); A("v_mov_b32 v4, s5"); A("s_mov_b64 exec, 1")
    A(f"buffer_store_dword v4, v3, s[40:43], 0 offen offset:{EP} sc1")
    A("s_mov_b64 exec, -1")
    A("L_c_noep:")
    A("s_waitcnt lgkmcnt(0)")
    stamp(A, 8, "g")
    A("s_barrier")

def k_mega(A):
    prologue(A, "k", "L_exit")
    phase_a(A)
    a2_c(A)
    conv_c(A)
    c_gemm(A)
    endpgm(A, 0)
    A("L_a_stats:")
    a2_h(A)
    h_pre_b2(A)
    A("s_waitcnt lgkmcnt(0)")
    stamp(A, 5)
    A("s_barrier")
    stamp(A, 7); mark(A, "B2")
    V = h_conv_time(A)
    h_gemm(A, V)
    mark_end(A)
    endpgm(A, 0)
    emit_stubs(A)
    A("L_exit:")
    A("s_endpgm")
    A("L_end_k:")

def build(kernels, header):
    A = Asm()
    for h in header: A.raw(h)
    A.raw('.amdgcn_target "amdgcn-amd-amdhsa--gfx950"')
    A.raw(".text")
    for name, fn, nv, acc_off, ns in kernels:
        A.raw(f".globl {name}"); A.raw(".p2align 8"); A.raw(f".type {name},@function"); A.raw(f"{name}:")
        A.hist = []
        fn(A)
    A.raw('.section .rodata,"a"')
    for name, fn, nv, acc_off, ns in kernels:
        A.raw(".p2align 6"); A.raw(f".amdhsa_kernel {name}")
        A.raw(f"  .amdhsa_next_free_vgpr {nv}"); A.raw(f"  .amdhsa_next_free_sgpr {ns}"); A.raw(f"  .amdhsa_accum_offset {acc_off}")
        A.raw("  .amdhsa_group_segment_fixed_size 0"); A.raw("  .amdhsa_kernarg_size 128"); A.raw("  .amdhsa_user_sgpr_count 2")
        A.raw("  .amdhsa_user_sgpr_kernarg_segment_ptr 1"); A.raw("  .amdhsa_system_sgpr_workgroup_id_x 1"); A.raw(".end_amdhsa_kernel")
    return A.text()

if __name__ == "__main__":
    ref = open(f"cdna_kernels/{NAME}.s.ref").read().splitlines()
    header = [l for l in ref if l.startswith(";") and "@launch" not in l and "Override" not in l and "grid=ceil" not in l][:18]
    header += [f"; @launch grid=(256,1,1) block=(512,1,1) lds={LDS_BYTES}"]
    open(sys.argv[1], "w").write(build([(NAME + "_kernel", k_mega, 256, 256, 102)], header))
```
